```python
import torch

def _softmax(x, axis=-1):
    return torch.softmax(x, dim=axis)
def _gelu(x):
    return torch.nn.functional.gelu(x, approximate="tanh")
def _silu(x):
    return torch.nn.functional.silu(x)
def _sigmoid(x):
    return torch.sigmoid(x)
def _layernorm(x, axis=-1, eps=1e-5):
    m = x.mean(dim=axis, keepdim=True)
    v = x.var(dim=axis, keepdim=True, unbiased=False)
    return (x - m) / torch.sqrt(v + eps)
def _scatter_add(tgt, idx, src, axis=0):
    return tgt.clone().index_add_(axis, idx, src)
def _segment_sum(src, seg, n):
    out = torch.zeros((n,) + src.shape[1:], dtype=src.dtype)
    return out.index_add_(0, seg, src)
def _pad(x, pw):
    flat = tuple(v for pair in reversed(pw) for v in pair)
    return torch.nn.functional.pad(x, flat)

kernel_name = 'interleave_layers__sliding_local_dilated__grouped_kv_mqa__prompt'

def setup_inputs():

    _w = (lambda a: (lambda t: t.to(torch.bfloat16) if t.is_floating_point() else t)(torch.as_tensor(a)))
    def _A_setup():
        B, S, D = 1, 2048, 576
        return {
            "x": _w((lambda *s: torch.randn(*s, dtype=torch.bfloat16) * 0.05)(B, S, D)),
            "wqkv": _w((lambda *s: torch.randn(*s, dtype=torch.bfloat16) * 0.05)(D, 3 * D)),
            "wo": _w((lambda *s: torch.randn(*s, dtype=torch.bfloat16) * 0.05)(D, D)),
        }
    _A_in = _A_setup()

    def _B_setup():
        B, S, D, H = 1, 2048, 576, 32
        Dh = D // H
        return {
            "x": _w((lambda *s: torch.randn(*s, dtype=torch.bfloat16) * 0.05)(B, S, D)),
            "wq": _w((lambda *s: torch.randn(*s, dtype=torch.bfloat16) * 0.05)(D, H * Dh)),
            "wk": _w((lambda *s: torch.randn(*s, dtype=torch.bfloat16) * 0.05)(D, Dh)),
            "wv": _w((lambda *s: torch.randn(*s, dtype=torch.bfloat16) * 0.05)(D, Dh)),
            "wo": _w((lambda *s: torch.randn(*s, dtype=torch.bfloat16) * 0.05)(H * Dh, D)),
        }
    _B_in = _B_setup()

    return {
        "A_x": _A_in["x"],
        "A_wqkv": _A_in["wqkv"],
        "A_wo": _A_in["wo"],
        "B_x": _B_in["x"],
        "B_wq": _B_in["wq"],
        "B_wk": _B_in["wk"],
        "B_wv": _B_in["wv"],
        "B_wo": _B_in["wo"],
    }

def reference(A_x, A_wqkv, A_wo, B_x, B_wq, B_wk, B_wv, B_wo):
    def _A_ref(x, wqkv, wo):
        B, S, D = x.shape
        H = 32; Dh = D // H
        W, dil = 8, 2
        qkv = (lambda x, *d: x.permute(*d))((x @ wqkv).reshape(B, S, 3, H, Dh), 2, 0, 3, 1, 4)
        q, k, v = qkv[0], qkv[1], qkv[2]
        scale = Dh ** -0.5
        pos = torch.arange(S)
        off = torch.arange(W) * dil
        idx = pos[:, None] - off[None, :]
        mask = idx >= 0
        idx_c = torch.where(mask, idx, 0).reshape(-1)
        kg = k[:, :, idx_c, :].reshape(B, H, S, W, Dh)
        vg = v[:, :, idx_c, :].reshape(B, H, S, W, Dh)
        logits = torch.einsum("bhsd,bhswd->bhsw", q, kg) * scale
        logits = torch.where(mask[None, None, :, :], logits, -1e9)
        attn = _softmax(logits, axis=-1)
        o = torch.einsum("bhsw,bhswd->bhsd", attn, vg)
        return (lambda x, *d: x.permute(*d))(o, 0, 2, 1, 3).reshape(B, S, D) @ wo

    def _B_ref(x, wq, wk, wv, wo):
        B, S, D = x.shape
        H = 32
        Dh = D // H
        q = (lambda x, *d: x.permute(*d))((x @ wq).reshape(B, S, H, Dh), 0, 2, 1, 3)
        k = x @ wk
        v = x @ wv
        scores = torch.einsum("bhqd,bkd->bhqk", q, k) * (Dh ** -0.5)
        p = _softmax(scores, axis=-1)
        o = torch.einsum("bhqk,bkd->bhqd", p, v)
        return (lambda x, *d: x.permute(*d))(o, 0, 2, 1, 3).reshape(B, S, H * Dh) @ wo

    x = A_x
    x = x + _A_ref(_layernorm(x, axis=-1), A_wqkv, A_wo)
    x = x + _B_ref(_layernorm(x, axis=-1), B_wq, B_wk, B_wv, B_wo)
    x = x + _A_ref(_layernorm(x, axis=-1), A_wqkv, A_wo)
    x = x + _B_ref(_layernorm(x, axis=-1), B_wq, B_wk, B_wv, B_wo)
    return x
```

```python
import re

TRANS = ("v_exp_f32", "v_log_f32", "v_rcp_f32", "v_rsq_f32", "v_sqrt_f32", "v_sin_f32", "v_cos_f32")
REG_RE = re.compile(r"^(-|\|)?(?:abs\()?([vsa])(?:(\d+)|\[(\d+):(\d+)\])\)?\|?$")


def parse_reg(tok):
    tok = tok.strip()
    if tok in ("vcc",):
        return [("s", 106), ("s", 107)]
    if tok == "exec":
        return [("s", 126), ("s", 127)]
    if tok == "m0":
        return [("s", 124)]
    m = REG_RE.match(tok)
    if not m:
        return []
    f = m.group(2)
    if m.group(3) is not None:
        return [(f, int(m.group(3)))]
    return [(f, i) for i in range(int(m.group(4)), int(m.group(5)) + 1)]


def split_ops(s):
    out, depth, cur = [], 0, ""
    for ch in s:
        if ch == "[":
            depth += 1
        if ch == "]":
            depth -= 1
        if ch == "," and depth == 0:
            out.append(cur.strip())
            cur = ""
        else:
            cur += ch
    if cur.strip():
        out.append(cur.strip())
    return out


class Ins:
    __slots__ = ("text", "op", "kind", "wr", "rd", "passes", "srcc", "srcab", "dpp", "states", "stdata", "lds_dma")

    def __init__(self, text):
        self.text = text
        body = text.split(";")[0].strip()
        parts = body.split(None, 1)
        op = parts[0]
        self.op = op
        rest = parts[1] if len(parts) > 1 else ""
        ops = split_ops(rest)
        mods = ""
        if ops:
            last = ops[-1].split(None, 1)
            ops[-1] = last[0]
            mods = last[1] if len(last) > 1 else ""
        regs = [parse_reg(o) for o in ops]
        self.wr, self.rd = set(), set()
        self.passes = 0
        self.srcc, self.srcab = [], set()
        self.dpp = "_dpp" in op or "row_" in mods or "quad_perm" in mods
        self.states = 1
        self.stdata = set()
        self.lds_dma = False
        if op == "s_nop":
            self.kind = "nop"
            self.states = int(ops[0], 0) + 1
        elif op.startswith("v_mfma") or op.startswith("v_smfmac"):
            self.kind = "mfma"
            self.passes = 8 if "32x32" in op else 4
            self.wr = set(regs[0])
            self.srcab = set(regs[1]) | set(regs[2])
            if op.startswith("v_smfmac"):
                self.srcc = regs[0]
                self.srcab |= set(regs[3])
            else:
                self.srcc = regs[3]
            self.rd = self.srcab | set(self.srcc)
        elif op.startswith("v_"):
            self.kind = "valu"
            if op.startswith("v_cmp"):
                self.wr = set(regs[0])
                for r in regs[1:]:
                    self.rd |= set(r)
            elif op.startswith("v_permlane") and "swap" in op:
                self.wr = set(regs[0]) | set(regs[1])
                self.rd = set(self.wr)
            elif op.startswith("v_add_co") or op.startswith("v_addc_co") or op.startswith("v_sub_co"):
                self.wr = set(regs[0]) | set(regs[1])
                for r in regs[2:]:
                    self.rd |= set(r)
            else:
                self.wr = set(regs[0])
                for r in regs[1:]:
                    self.rd |= set(r)
                if op.startswith("v_fmac") or op.startswith("v_dot2c") or self.dpp or op.startswith("v_writelane"):
                    self.rd |= set(regs[0])
        elif op.startswith("buffer_") or op.startswith("global_"):
            self.kind = "vmem"
            if op.startswith("buffer_wbl2") or op.startswith("buffer_inv"):
                pass
            elif " lds" in (" " + mods) and "load" in op:
                self.lds_dma = True
                for r in regs:
                    self.rd |= set(r)
                self.rd.add(("s", 124))
            elif "load" in op:
                self.wr = set(regs[0])
                for r in regs[1:]:
                    self.rd |= set(r)
            else:
                for r in regs:
                    self.rd |= set(r)
                if "atomic" in op and "sc0" in mods:
                    self.wr = set(regs[0])
                if "x3" in op or "x4" in op:
                    self.stdata = set(regs[0]) if op.startswith("buffer_") else set(regs[1])
        elif op.startswith("ds_"):
            self.kind = "ds"
            if "read" in op or "permute" in op or "swizzle" in op or "_rtn" in op:
                self.wr = set(regs[0])
                for r in regs[1:]:
                    self.rd |= set(r)
            else:
                for r in regs:
                    self.rd |= set(r)
        elif op.startswith("s_"):
            self.kind = "salu"
            if op.startswith(("s_cmp", "s_cbranch", "s_branch", "s_waitcnt", "s_barrier", "s_endpgm", "s_setprio", "s_sleep", "s_bitcmp")):
                for r in regs:
                    self.rd |= set(r)
            else:
                self.wr = set(regs[0]) if regs else set()
                for r in regs[1:]:
                    self.rd |= set(r)
                if "saveexec" in op:
                    self.wr |= {("s", 126), ("s", 127)}
        else:
            raise ValueError("unknown instruction: " + text)


def need(p, c):
    n = 0
    pv = {r for r in p.wr if r[0] != "s"}
    ps = {r for r in p.wr if r[0] == "s"}
    if p.kind == "valu":
        isdot = p.op.startswith("v_dot")
        if c.kind == "mfma" and pv & c.rd:
            n = max(n, 3 if isdot else 2)
        if c.kind == "valu":
            if pv & c.rd:
                if p.op.startswith(TRANS) and not c.op.startswith(TRANS):
                    n = max(n, 1)
                if c.dpp or c.op.startswith("v_permlane"):
                    n = max(n, 2)
                if c.op.startswith(("v_readlane", "v_readfirstlane")):
                    n = max(n, 1)
            if isdot and (pv & (c.rd | c.wr)):
                if not (c.op == p.op and c.wr == p.wr):
                    n = max(n, 3)
            if ps & c.rd:
                n = max(n, 4 if c.op.startswith(("v_readlane", "v_writelane")) else 2)
        if isdot and c.kind in ("vmem", "ds") and (pv & (c.rd | c.wr)):
            n = max(n, 3)
        if c.kind == "vmem" and ps & c.rd:
            n = max(n, 5)
        if c.kind == "salu" and ps & c.rd:
            n = max(n, 1)
    if p.kind == "mfma":
        big = {4: 8, 8: 12}[p.passes]
        if c.kind == "mfma":
            if p.wr & c.srcab:
                n = max(n, big)
            cs = set(c.srcc)
            if p.wr & cs and not (p.wr == cs and p.op == c.op):
                n = max(n, {4: 6, 8: 10}[p.passes])
            if (p.wr & c.wr) and not (p.wr & cs) and p.passes != c.passes:
                n = max(n, big)
        elif c.kind in ("valu", "vmem", "ds"):
            if p.wr & (c.rd | c.wr):
                n = max(n, big)
            if c.kind == "valu" and set(p.srcc) & c.wr:
                n = max(n, {4: 3, 8: 7}[p.passes])
    if p.kind == "salu" and ("s", 124) in p.wr and c.lds_dma:
        n = max(n, 1)
    if p.stdata and (p.stdata & c.wr):
        n = max(n, 2 if c.kind == "valu" else 1)
    return n


class Asm:
    def __init__(self):
        self.items = []

    def __call__(self, text):
        for line in text.strip().split("\n"):
            line = line.strip()
            if not line or line.startswith(";"):
                continue
            if line.endswith(":"):
                self.items.append(("l", line))
            elif line.startswith("."):
                self.items.append(("t", line))
            else:
                self.items.append(("i", Ins(line)))

    def label(self, name):
        self.items.append(("l", name + ":"))

    def raw(self, text):
        self.items.append(("t", text))

    def fence(self):
        self.items.append(("f", None))

    def render(self):
        out = []
        hists = [[]]
        saved = {}
        nnop = 0
        for kind, it in self.items:
            if kind == "f":
                hists = [[]]
                continue
            if kind == "l":
                hists += saved.pop(it[:-1], [])
            if kind != "i":
                out.append(it)
                continue
            req = 0
            for hist in hists:
                dist = 0
                for p in reversed(hist):
                    if dist >= 20:
                        break
                    r = need(p, it) - dist
                    if r > req:
                        req = r
                    dist += p.states
            while req > 0:
                k = min(req, 16)
                nop = Ins(f"s_nop {k-1}")
                out.append("    " + nop.text)
                for hist in hists:
                    hist.append(nop)
                req -= k
                nnop += 1
            out.append("    " + it.text)
            uniq = []
            for hist in hists:
                hist.append(it)
                del hist[:-24]
                if not any(len(h) == len(hist) and all(x is y for x, y in zip(h, hist)) for h in uniq):
                    uniq.append(hist)
            hists = uniq
            if it.op.startswith("s_cbranch") or it.op == "s_branch":
                tgt = it.text.split(";")[0].split()[1]
                saved.setdefault(tgt, []).extend(list(h) for h in hists)
            if it.op in ("s_endpgm", "s_branch"):
                hists = [[]]
        self.nnop = nnop
        return "\n".join(out) + "\n"


def vr(base, n=1):
    return f"v{base}" if n == 1 else f"v[{base}:{base+n-1}]"


def ar(base, n=1):
    return f"a{base}" if n == 1 else f"a[{base}:{base+n-1}]"


def sr(base, n=1):
    return f"s{base}" if n == 1 else f"s[{base}:{base+n-1}]"


class Pool:
    def __init__(self, start=0, limit=256):
        self.next = start
        self.limit = limit
        self.high = start

    def get(self, n=1, align=1):
        if n > 1:
            align = max(align, 2)
        b = (self.next + align - 1) // align * align
        self.next = b + n
        assert self.next <= self.limit, f"out of registers ({self.next} > {self.limit})"
        self.high = max(self.high, self.next)
        return b
```

```python
import struct
from asmlib import *
from layout import *

N_T1, N_T2, N_T3, N_T3B, N_T4, N_T5, N_T6 = 108, 36, 18, 2, 18, 64, 1
B_T2 = N_T1
B_T3 = B_T2 + N_T2
B_T3B = B_T3 + N_T3
B_T4 = B_T3B + N_T3B
B_T5 = B_T4 + N_T4
B_T6 = B_T5 + N_T5
K0_GRID = B_T6 + N_T6
K0_LDS = 36 * 16 * 8


def fbits(x):
    return struct.unpack("<I", struct.pack("<f", x))[0]


def src_srd(a, argoff, nbytes):
    a(f"""
    s_load_dwordx2 s[12:13], s[0:1], {argoff}
    s_mov_b32 s14, {nbytes}
    s_mov_b32 s15, 0x20000
    """)


def loads(a, w0, voff, soffs):
    for e, so in enumerate(soffs):
        a(f"buffer_load_dword v{w0+e}, v{voff}, s[12:15], {so} offen")


def perms(a, w0, fx, fy):
    for q in range(4):
        a(f"v_perm_b32 v{fx+q}, v{w0+2*q+1}, v{w0+2*q}, s30")
        a(f"v_perm_b32 v{fy+q}, v{w0+2*q+1}, v{w0+2*q}, s31")


def gen_k0(a):
    SO = [f"s{32+e}" for e in range(8)]
    a(f"""
    s_cmp_ge_u32 s2, {K0_GRID}
    s_cbranch_scc1 K0_END
    s_load_dwordx2 s[8:9], s[0:1], 80
    s_mov_b32 s10, {WS_END}
    s_mov_b32 s11, 0x20000
    v_lshrrev_b32 v4, 6, v0
    v_and_b32 v1, 63, v0
    v_readfirstlane_b32 s3, v4
    v_and_b32 v2, 15, v0
    v_lshrrev_b32 v3, 4, v1
    s_mov_b32 s30, 0x05040100
    s_mov_b32 s31, 0x07060302
    s_cmp_ge_u32 s2, {B_T5}
    s_cbranch_scc1 K0_T5
    s_cmp_ge_u32 s2, {B_T4}
    s_cbranch_scc1 K0_T4
    s_cmp_ge_u32 s2, {B_T3B}
    s_cbranch_scc1 K0_T3B
    s_cmp_ge_u32 s2, {B_T3}
    s_cbranch_scc1 K0_T3
    s_cmp_ge_u32 s2, {B_T2}
    s_cbranch_scc1 K0_T2
    """)
    src_srd(a, 8, 576 * 1728 * 2)
    a(f"""
    s_lshr_b32 s16, s2, 1
    s_and_b32 s17, s2, 1
    s_mul_i32 s17, s17, 9
    s_add_u32 s17, s17, s3
    s_mov_b32 s18, 0
    s_cmp_ge_u32 s16, 18
    s_addc_u32 s18, s18, 0
    s_cmp_ge_u32 s16, 36
    s_addc_u32 s18, s18, 0
    s_mul_i32 s19, s18, 18
    s_sub_u32 s19, s16, s19
    s_lshl_b32 s19, s19, 5
    """)
    for e in range(8):
        a(f"s_mov_b32 {SO[e]}, {e*3456}")
    a(f"""
    s_mul_i32 s20, s17, {32*3456}
    s_lshl_b32 s21, s16, 6
    s_add_u32 s20, s20, s21
    v_mul_u32_u24 v5, {8*3456}, v3
    v_lshl_add_u32 v5, v2, 2, v5
    v_add_u32 v5, s20, v5
    v_lshl_add_u32 v6, v2, 1, s19
    v_mul_u32_u24 v7, 3641, v6
    v_lshrrev_b32 v7, 16, v7
    v_mul_u32_u24 v8, 18, v7
    v_sub_u32 v8, v6, v8
    v_and_b32 v9, 1, v7
    v_lshrrev_b32 v7, 1, v7
    s_lshl_b32 s22, s18, 11
    v_lshlrev_b32 v10, 10, v9
    v_lshl_add_u32 v10, v8, 4, v10
    v_add_u32 v10, s22, v10
    s_lshl_b32 s23, s18, 5
    s_cmp_eq_u32 s18, 2
    s_cselect_b32 s24, 32, 64
    s_cselect_b32 s23, 128, s23
    s_add_u32 s23, s23, 6144
    v_mul_u32_u24 v11, s24, v9
    v_add_u32 v11, s23, v11
    v_cmp_gt_u32 s[26:27], 16, v8
    v_cndmask_b32 v10, v11, v10, s[26:27]
    s_mov_b32 s25, {18*7168}
    v_mul_lo_u32 v7, v7, s25
    s_mul_i32 s28, s17, 7168
    s_add_u32 s28, s28, {WAF}
    v_lshl_add_u32 v10, v3, 8, v10
    v_add3_u32 v10, v10, v7, s28
    s_branch K0_UNIT
    """)
    a.label("K0_T2")
    src_srd(a, 16, 576 * 576 * 2)
    a(f"""
    s_sub_u32 s16, s2, {B_T2}
    s_and_b32 s17, s16, 1
    s_lshr_b32 s16, s16, 1
    s_mul_i32 s17, s17, 9
    s_add_u32 s17, s17, s3
    s_lshl_b32 s19, s16, 5
    v_lshl_add_u32 v6, v2, 1, s19
    s_cmp_ge_u32 s17, 16
    s_cbranch_scc1 K0_T2R
    """)
    for e in range(8):
        a(f"s_mov_b32 {SO[e]}, {e*1152}")
    a(f"""
    v_lshrrev_b32 v7, 1, v3
    v_mul_u32_u24 v7, 18, v7
    v_and_b32 v8, 1, v3
    v_lshl_add_u32 v7, v8, 3, v7
    s_mul_i32 s20, s17, 36
    s_branch K0_T2J
    """)
    a.label("K0_T2R")
    for e in range(8):
        a(f"s_mov_b32 {SO[e]}, {((e >> 1) * 18 + (e & 1)) * 1152}")
    a(f"""
    v_mul_u32_u24 v7, 72, v3
    s_sub_u32 s20, s17, 16
    s_mul_i32 s20, s20, 288
    s_add_u32 s20, s20, 16
    """)
    a.label("K0_T2J")
    a(f"""
    v_add_u32 v7, s20, v7
    v_mul_u32_u24 v5, 1152, v7
    v_lshl_add_u32 v5, v6, 1, v5
    v_mul_u32_u24 v7, 911, v6
    v_lshrrev_b32 v7, 16, v7
    v_mul_u32_u24 v8, 72, v7
    v_sub_u32 v8, v6, v8
    v_lshrrev_b32 v9, 4, v8
    v_and_b32 v8, 15, v8
    v_lshlrev_b32 v10, 10, v9
    v_lshl_add_u32 v10, v8, 4, v10
    v_lshl_add_u32 v10, v3, 8, v10
    v_mul_u32_u24 v7, {18*5120}, v7
    s_mul_i32 s28, s17, 5120
    s_add_u32 s28, s28, {WOAF}
    v_add3_u32 v10, v10, v7, s28
    """)
    a.label("K0_UNIT")
    a("s_waitcnt lgkmcnt(0)")
    loads(a, 16, 5, SO)
    a("s_waitcnt vmcnt(0)")
    perms(a, 16, 24, 28)
    a(f"""
    buffer_store_dwordx4 v[24:27], v10, s[8:11], 0 offen
    buffer_store_dwordx4 v[28:31], v10, s[8:11], 0 offen offset:16
    s_endpgm
    """)

    def colsum_reduce(tag):
        a(f"""
        s_lshl_b32 s20, s3, 9
        v_lshlrev_b32 v42, 3, v1
        v_add_u32 v43, s20, v42
        ds_write_b64 v43, v[40:41]
        s_waitcnt lgkmcnt(0)
        s_barrier
        s_cmp_lg_u32 s3, 0
        s_cbranch_scc1 K0_END
        """)
        for w in range(1, 9):
            a(f"ds_read_b64 v[{44+2*w}:{45+2*w}], v42 offset:{w*512}")
        a("s_waitcnt lgkmcnt(0)")
        for w in range(1, 9):
            a(f"v_add_f32 v40, v40, v{44+2*w}")
            a(f"v_add_f32 v41, v41, v{45+2*w}")
        a("""
        v_mov_b32 v42, v40
        v_mov_b32 v43, v41
        v_permlane32_swap_b32 v40, v42
        v_permlane32_swap_b32 v41, v43
        v_add_f32 v40, v40, v42
        v_add_f32 v41, v41, v43
        v_mov_b32 v42, v40
        v_mov_b32 v43, v41
        v_permlane16_swap_b32 v40, v42
        v_permlane16_swap_b32 v41, v43
        v_add_f32 v40, v40, v42
        v_add_f32 v41, v41, v43
        """)

    def two_units(stride):
        a("s_waitcnt lgkmcnt(0)")
        loads(a, 16, 5, SO)
        a(f"v_add_u32 v12, {9*32*stride}, v5")
        loads(a, 64, 12, SO)
        a("""
        s_mov_b32 s29, 0x3f803f80
        v_mov_b32 v40, 0
        v_mov_b32 v41, 0
        s_waitcnt vmcnt(8)
        """)
        perms(a, 16, 24, 28)
        a("s_waitcnt vmcnt(0)")
        perms(a, 64, 72, 76)
        for base in (24, 72):
            for q in range(4):
                a(f"v_dot2_f32_bf16 v40, v{base+q}, s29, v40")
                a(f"v_dot2_f32_bf16 v41, v{base+4+q}, s29, v41")

    a.label("K0_T3")
    src_srd(a, 32, 576 * 576 * 2)
    for e in range(8):
        a(f"s_mov_b32 {SO[e]}, {e*1152}")
    a(f"""
    s_sub_u32 s16, s2, {B_T3}
    s_lshl_b32 s19, s16, 5
    v_lshl_add_u32 v6, v2, 1, s19
    s_mul_i32 s20, s3, {32*1152}
    v_mul_u32_u24 v5, {8*1152}, v3
    v_lshl_add_u32 v5, v6, 1, v5
    v_add_u32 v5, s20, v5
    v_mul_u32_u24 v7, 3641, v6
    v_lshrrev_b32 v7, 16, v7
    v_mul_u32_u24 v8, 18, v7
    v_sub_u32 v8, v6, v8
    v_and_b32 v9, 3, v7
    v_lshrrev_b32 v7, 2, v7
    v_lshl_add_u32 v10, v9, 4, v8
    v_lshl_add_u32 v11, v9, 2, 64
    v_cmp_gt_u32 s[26:27], 16, v8
    v_cndmask_b32 v11, v11, v10, s[26:27]
    v_lshrrev_b32 v9, 4, v11
    v_and_b32 v8, 15, v11
    v_lshlrev_b32 v10, 10, v9
    v_lshl_add_u32 v10, v8, 4, v10
    v_lshl_add_u32 v10, v3, 8, v10
    v_mul_u32_u24 v13, {18*5120}, v7
    s_mul_i32 s28, s3, 5120
    s_add_u32 s28, s28, {WQF}
    v_add3_u32 v10, v10, v13, s28
    v_mul_u32_u24 v13, 80, v7
    v_add_lshl_u32 v13, v13, v11, 2
    """)
    two_units(1152)
    a(f"""
    s_mov_b32 s21, {9*5120}
    buffer_store_dwordx4 v[24:27], v10, s[8:11], 0 offen
    buffer_store_dwordx4 v[28:31], v10, s[8:11], 0 offen offset:16
    buffer_store_dwordx4 v[72:75], v10, s[8:11], s21 offen
    buffer_store_dwordx4 v[76:79], v10, s[8:11], s21 offen offset:16
    """)
    colsum_reduce("a")
    a(f"""
    s_mov_b32 s21, {CSQ}
    s_mov_b64 exec, 0xffff
    buffer_store_dwordx2 v[40:41], v13, s[8:11], s21 offen
    s_endpgm
    """)

    a.label("K0_T3B")
    a(f"""
    s_sub_u32 s16, s2, {B_T3B}
    s_cmp_eq_u32 s16, 0
    s_cbranch_scc0 K0_T3BV
    s_load_dwordx2 s[12:13], s[0:1], 40
    s_branch K0_T3BJ
    """)
    a.label("K0_T3BV")
    a("s_load_dwordx2 s[12:13], s[0:1], 48")
    a.label("K0_T3BJ")
    a(f"""
    s_mov_b32 s14, {576*18*2}
    s_mov_b32 s15, 0x20000
    """)
    for e in range(8):
        a(f"s_mov_b32 {SO[e]}, {e*36}")
    a(f"""
    s_mul_i32 s20, s3, {32*36}
    v_mul_u32_u24 v5, {8*36}, v3
    v_lshl_add_u32 v5, v2, 2, v5
    v_add_u32 v5, s20, v5
    s_mul_i32 s28, s16, {18*1024}
    s_lshl_b32 s21, s3, 10
    s_add_u32 s28, s28, s21
    s_add_u32 s28, s28, {WKVF}
    v_lshlrev_b32 v10, 5, v2
    v_lshl_add_u32 v10, v3, 8, v10
    v_add_u32 v10, s28, v10
    v_mov_b32 v11, {OOB}
    v_cmp_gt_u32 s[26:27], 8, v2
    v_cndmask_b32 v10, v11, v10, s[26:27]
    s_mul_i32 s22, s16, {4*92160 + 128}
    s_mul_i32 s21, s3, 5120
    s_add_u32 s22, s22, s21
    s_add_u32 s22, s22, {WQF + 4096 + 48}
    v_lshlrev_b32 v14, 8, v3
    v_add_u32 v14, s22, v14
    v_cmp_eq_u32 s[24:25], 8, v2
    v_cndmask_b32 v14, v11, v14, s[24:25]
    """)
    two_units(36)
    a(f"""
    s_mov_b32 s21, {9*1024}
    buffer_store_dwordx4 v[24:27], v10, s[8:11], 0 offen
    buffer_store_dwordx4 v[28:31], v10, s[8:11], 0 offen offset:16
    buffer_store_dwordx4 v[72:75], v10, s[8:11], s21 offen
    buffer_store_dwordx4 v[76:79], v10, s[8:11], s21 offen offset:16
    """)
    for cb in range(4):
        a(f"""
        s_mov_b32 s21, {cb*92160}
        s_mov_b32 s23, {cb*92160 + 9*5120}
        buffer_store_dwordx4 v[24:27], v14, s[8:11], s21 offen
        buffer_store_dwordx4 v[28:31], v14, s[8:11], s21 offen offset:64
        buffer_store_dwordx4 v[72:75], v14, s[8:11], s23 offen
        buffer_store_dwordx4 v[76:79], v14, s[8:11], s23 offen offset:64
        """)
    colsum_reduce("b")
    a(f"""
    s_lshl_b32 s21, s16, 6
    s_add_u32 s21, s21, {CSKV}
    v_lshlrev_b32 v13, 3, v2
    s_mov_b64 exec, 0xff
    buffer_store_dwordx2 v[40:41], v13, s[8:11], s21 offen
    s_mul_i32 s21, s16, {4*320 + 32}
    s_add_u32 s21, s21, {CSQ + (64+3)*4}
    s_mov_b64 exec, 0x100
    v_mov_b32 v13, 0
    """)
    for cb in range(4):
        a(f"buffer_store_dword v40, v13, s[8:11], s21 offen offset:{cb*320}")
        a(f"buffer_store_dword v41, v13, s[8:11], s21 offen offset:{cb*320+16}")
    a("s_endpgm")

    a.label("K0_T4")
    src_srd(a, 56, 576 * 576 * 2)
    a(f"""
    s_cmp_ge_u32 s3, 8
    s_cbranch_scc1 K0_END
    s_sub_u32 s16, s2, {B_T4}
    s_lshl_b32 s19, s16, 5
    v_lshl_add_u32 v6, v2, 1, s19
    s_mul_i32 s20, s3, {72*1152}
    v_mul_u32_u24 v5, {18*1152}, v3
    v_lshl_add_u32 v5, v6, 1, v5
    v_add_u32 v5, s20, v5
    v_lshrrev_b32 v7, 4, v6
    v_and_b32 v8, 15, v6
    v_mul_u32_u24 v7, 2560, v7
    s_mul_i32 s28, s3, {36*2560}
    s_add_u32 s28, s28, {WOBF}
    v_add_u32 v7, s28, v7
    v_lshlrev_b32 v10, 4, v8
    v_lshl_add_u32 v10, v3, 8, v10
    v_lshrrev_b32 v11, 1, v10
    v_add_u32 v10, v10, v7
    v_add_u32 v11, v11, v7
    """)
    for e in range(5):
        a(f"s_mov_b32 {SO[e]}, {e*4608}")
    a("s_waitcnt lgkmcnt(0)")
    for e in range(18):
        a(f"buffer_load_dword v{16+e}, v5, s[12:15], {SO[e//4]} offen offset:{(e%4)*1152}")
    a("""
    v_mov_b32 v57, 0
    v_mov_b32 v59, 0
    s_waitcnt vmcnt(0)
    """)
    perms(a, 16, 40, 44)
    perms(a, 24, 48, 52)
    a(f"""
    v_perm_b32 v56, v33, v32, s30
    v_perm_b32 v58, v33, v32, s31
    buffer_store_dwordx4 v[40:43], v10, s[8:11], 0 offen
    buffer_store_dwordx4 v[44:47], v10, s[8:11], 0 offen offset:16
    buffer_store_dwordx4 v[48:51], v10, s[8:11], 0 offen offset:1024
    buffer_store_dwordx4 v[52:55], v10, s[8:11], 0 offen offset:1040
    buffer_store_dwordx4 v[56:59], v11, s[8:11], 0 offen offset:2048
    s_endpgm
    """)

    a.label("K0_T5")
    a(f"""
    s_cmp_ge_u32 s2, {B_T6}
    s_cbranch_scc1 K0_T6
    """)
    src_srd(a, 0, FMSZ)
    a(f"""
    s_cmp_ge_u32 s3, 8
    s_cbranch_scc1 K0_END
    s_sub_u32 s16, s2, {B_T5}
    s_lshl_b32 s16, s16, 5
    s_lshl_b32 s17, s3, 2
    s_add_u32 s16, s16, s17
    s_mul_i32 s20, s16, 1152
    v_mul_u32_u24 v5, 1152, v3
    v_lshl_add_u32 v5, v2, 4, v5
    v_mov_b32 v6, {OOB}
    v_cmp_gt_u32 s[26:27], 8, v2
    v_cndmask_b32 v6, v6, v5, s[26:27]
    s_waitcnt lgkmcnt(0)
    """)
    for ps in range(5):
        a(f"buffer_load_dwordx4 v[{16+4*ps}:{19+4*ps}], v{5 if ps < 4 else 6}, s[12:15], s20 offen offset:{ps*256}")
    a(f"""
    v_and_b32 v7, 3, v1
    v_lshrrev_b32 v8, 2, v1
    v_lshl_add_u32 v9, v7, 4, v8
    v_lshlrev_b32 v9, 2, v9
    s_lshr_b32 s21, s16, 4
    s_mul_i32 s21, s21, {TILE}
    s_and_b32 s22, s16, 15
    s_lshl_b32 s22, s22, 4
    s_add_u32 s21, s21, s22
    s_add_u32 s22, s21, {XR}
    s_add_u32 s21, s21, {XN}
    v_lshlrev_b32 v10, 8, v8
    v_lshl_add_u32 v10, v7, 4, v10
    s_mov_b32 s29, 0x3f803f80
    v_mov_b32 v40, 0
    v_mov_b32 v41, 0
    s_waitcnt vmcnt(0)
    """)
    for i in range(20):
        a(f"ds_bpermute_b32 v{44+i}, v9, v{16+i}")
    for i in range(20):
        a(f"v_dot2_f32_bf16 v40, v{16+i}, s29, v40")
        a(f"v_dot2_f32_bf16 v41, v{16+i}, v{16+i}, v41")
    for sh in (8, 4, 2, 1):
        a(f"v_add_f32_dpp v40, v40, v40 row_ror:{sh} row_mask:0xf bank_mask:0xf")
        a(f"v_add_f32_dpp v41, v41, v41 row_ror:{sh} row_mask:0xf bank_mask:0xf")
    a(f"""
    v_mul_f32 v40, {fbits(1.0/576)}, v40
    v_mul_f32 v41, {fbits(1.0/576)}, v41
    v_fma_f32 v41, -v40, v40, v41
    v_max_f32 v41, 0, v41
    v_add_f32 v41, {fbits(EPS)}, v41
    v_rsq_f32 v41, v41
    v_mul_f32 v40, -1.0, v40
    v_mul_f32 v40, v40, v41
    ds_bpermute_b32 v42, v9, v40
    ds_bpermute_b32 v43, v9, v41
    s_mov_b32 s29, 0xffff0000
    s_waitcnt lgkmcnt(0)
    """)
    for ps in range(5):
        if ps == 4:
            a("s_mov_b32 exec_hi, 0")
        a(f"s_add_u32 s23, s22, {ps*4096}")
        a(f"buffer_store_dwordx4 v[{44+4*ps}:{47+4*ps}], v10, s[8:11], s23 offen")
        for q in range(4):
            r = 44 + 4 * ps + q
            a(f"""
            v_lshlrev_b32 v11, 16, v{r}
            v_and_b32 v12, s29, v{r}
            v_fma_f32 v11, v11, v43, v42
            v_fma_f32 v12, v12, v43, v42
            v_cvt_pk_bf16_f32 v{16+4*ps+q}, v11, v12
            """)
        a(f"s_add_u32 s23, s21, {ps*4096}")
        a(f"buffer_store_dwordx4 v[{16+4*ps}:{19+4*ps}], v10, s[8:11], s23 offen")
    a("s_endpgm")

    a.label("K0_T6")
    a(f"""
    v_mov_b32 v16, 0x3f803f80
    v_mov_b32 v17, v16
    v_mov_b32 v18, v16
    v_mov_b32 v19, v16
    v_lshlrev_b32 v5, 9, v0
    v_add_u32 v5, {VF + 18*16}, v5
    v_mov_b32 v6, {OOB}
    v_cmp_gt_u32 vcc, 256, v0
    v_cndmask_b32 v5, v6, v5, vcc
    v_lshrrev_b32 v7, 2, v0
    v_mul_u32_u24 v7, 5120, v7
    v_and_b32 v8, 3, v0
    v_lshl_add_u32 v7, v8, 8, v7
    s_mov_b32 s21, {WQF + 4096 + 32}
    s_waitcnt lgkmcnt(0)
    buffer_store_dwordx4 v[16:19], v5, s[8:11], 0 offen
    """)
    for q in range(4):
        a(f"buffer_store_dwordx4 v[16:19], v7, s[8:11], s21 offen offset:{q*64}")
    a.label("K0_END")
    a("s_endpgm")
    return dict(vgpr=80, sgpr=48)
```

```python
S, D, H, DH = 2048, 576, 32, 18
FMSZ = S * D * 2
TILE = 18432

XN = 0
XR = XN + FMSZ
OA = XR + FMSZ
X1 = OA + FMSZ
QF = X1 + FMSZ
QR = QF + 2097152
KM = QR + 262144
KR = KM + 65536
VF = KR + 8192
KN = VF + 131072
CSQ = KN + 1024
CSKV = CSQ + 2560
WAF = CSQ + 4096
WOAF = WAF + 16 * 18 * 7168
WQF = WOAF + 737280 + 2048
WKVF = WQF + 737280 + 2048
WOBF = WKVF + 36864 + 2048
WS_END = WOBF + 737280 + 2048

OOB = 0x7FFFFF00

import math
SCALE_LOG2E = (DH ** -0.5) * math.log2(math.e)
EPS = 1e-5
```

```python
from asmlib import *
from layout import *
from k0 import fbits

IMG = 18 * 8192
EX = IMG
EXSLOT = 2304
VRO = EX + 5 * EXSLOT
P1_LDS = VRO + 4 * 288
CH = 2
MF = "v_mfma_f32_16x16x32_bf16"


def wg_map(a):
    a("""
    s_and_b32 s18, s2, 7
    s_lshr_b32 s19, s2, 3
    s_lshr_b32 s16, s18, 1
    s_lshl_b32 s16, s16, 2
    s_and_b32 s20, s19, 3
    s_add_u32 s16, s16, s20
    s_and_b32 s17, s18, 1
    s_lshl_b32 s17, s17, 3
    s_lshr_b32 s20, s19, 2
    s_add_u32 s17, s17, s20
    """)


def gen_p1(a):
    WB = [16, 52]
    ACC = 88
    accA = lambda t: ACC + 4 * t
    accB = lambda t: ACC + 28 + 4 * t
    accH, accHR = ACC + 56, ACC + 60
    xa = lambda s: 8 * s
    xb = lambda s: 8 * s + 4
    a(f"""
    s_cmp_ge_u32 s2, 256
    s_cbranch_scc1 P1_END
    s_load_dwordx2 s[8:9], s[0:1], 80
    s_mov_b32 s10, {WS_END}
    s_mov_b32 s11, 0x20000
    v_lshrrev_b32 v4, 6, v0
    v_and_b32 v1, 63, v0
    v_readfirstlane_b32 s3, v4
    v_lshlrev_b32 v5, 4, v1
    """)
    wg_map(a)
    a(f"""
    s_mul_i32 s20, s17, {18*7168}
    s_lshl_b32 s21, s3, 11
    s_add_u32 s20, s20, s21
    s_add_u32 s20, s20, {WAF}
    s_mov_b32 s22, s20
    s_mov_b32 s23, 7168
    s_lshl_b32 s24, s16, 3
    s_sub_u32 s25, s24, 1
    s_max_i32 s25, s25, 0
    s_mul_i32 s25, s25, {TILE}
    s_add_u32 s25, s25, {XN}
    """)
    a(f"""
    s_cmp_eq_u32 s3, 3
    s_cselect_b32 s23, 1024, s23
    s_cselect_b32 s22, s25, s22
    s_cselect_b32 s27, 0, 1024
    s_add_u32 s22, s22, s27
    s_lshl_b32 s26, s3, 1
    s_add_u32 s24, s24, s26
    s_mul_i32 s24, s24, {TILE}
    s_add_u32 s24, s24, {XN}
    s_add_u32 s25, s24, {TILE}
    s_mov_b32 s26, s21
    s_waitcnt lgkmcnt(0)
    """)

    def issue(s):
        a(f"""
        s_mov_b32 m0, s26
        s_add_u32 s26, s26, 1024
        buffer_load_dwordx4 v5, s[8:11], s20 offen lds
        s_mov_b32 m0, s26
        s_add_u32 s26, s26, 7168
        buffer_load_dwordx4 v5, s[8:11], s22 offen lds
        buffer_load_dwordx4 {ar(xa(s),4)}, v5, s[8:11], s24 offen offset:{(s%4)*1024}
        buffer_load_dwordx4 {ar(xb(s),4)}, v5, s[8:11], s25 offen offset:{(s%4)*1024}
        s_add_u32 s20, s20, 7168
        s_add_u32 s22, s22, s23
        """)
        if s % 4 == 3:
            a("s_add_u32 s24, s24, 4096\ns_add_u32 s25, s25, 4096")

    NUP = 14
    for s in range(NUP):
        issue(s)
    issued = NUP
    a(f"""
    v_add_u32 v7, 0x10000, v5
    v_add_u32 v8, 0x20000, v5
    s_add_u32 s28, s3, 2
    s_lshl_b32 s28, s28, 10
    s_cmp_ge_u32 s3, 2
    s_cselect_b32 s29, 7168, s28
    s_cselect_b32 s28, s28, 7168
    v_add_u32 v9, s29, v5
    v_add_u32 v10, s29, v7
    v_add_u32 v11, s29, v8
    v_add_u32 v12, s28, v5
    v_add_u32 v13, s28, v7
    v_add_u32 v14, s28, v8
    """)

    def reads(s):
        w = WB[s & 1]
        seg, off = divmod(s * 8192, 65536)
        out = []
        order = [0, 1, 2, 3, 4, 5, 6]
        for t in order:
            out.append(f"ds_read_b128 {vr(w+4*t,4)}, v{(5,7,8)[seg]} offset:{off+t*1024}")
        out.append(f"ds_read_b128 {vr(w+28,4)}, v{9+seg} offset:{off}")
        out.append(f"ds_read_b128 {vr(w+32,4)}, v{12+seg} offset:{off}")
        return out

    def mfmas(s):
        w = WB[s & 1]
        out = []
        c = (lambda r: vr(r, 4)) if s > 0 else (lambda r: "0")
        for t in range(7):
            for acc, x in ((accA(t), xa(s)), (accB(t), xb(s))):
                if t in (4, 5):
                    out.append((t + 1, f"{MF} {vr(acc,4)}, {ar(x,4)}, {vr(w+4*t,4)}, {c(acc)}"))
                else:
                    out.append((t + 1, f"{MF} {vr(acc,4)}, {vr(w+4*t,4)}, {ar(x,4)}, {c(acc)}"))
        out.append((9, f"{MF} {vr(accH,4)}, {vr(w+28,4)}, {vr(w+32,4)}, {c(accH)}"))
        out.append((9, f"{MF} {vr(accHR,4)}, {vr(w+24,4)}, {vr(w+32,4)}, {c(accHR)}"))
        return out

    def sync(s):
        nonlocal issued
        last = min(s + CH, 18)
        a(f"s_waitcnt vmcnt({4*(issued-last)})")
        a("s_barrier")
        for _ in range(CH):
            if issued < 18:
                issue(issued)
                issued += 1

    sync(0)
    for r in reads(0):
        a(r)
    for s in range(18):
        ms = mfmas(s)
        nxt = reads(s + 1) if s + 1 < 18 else []
        done_reads = 0
        new_issued = 0
        for i, (needr, m) in enumerate(ms):
            if i == 4 and nxt and (s + 1) % CH == 0:
                sync(s + 1)
            if i >= 4 and new_issued < len(nxt):
                a(nxt[new_issued])
                new_issued += 1
            if needr > done_reads:
                a(f"s_waitcnt lgkmcnt({9 - needr + new_issued})")
                done_reads = needr
            a(m)
        assert new_issued == len(nxt)

    Kop = lambda t, h: 16 + 8 * t + 4 * h
    Qop = lambda t, h: 40 + 8 * t + 4 * h
    Vop = lambda h: 56 + 6 * h
    VRq = 68
    T = 74
    a(f"""
    v_and_b32 v2, 15, v1
    v_lshrrev_b32 v3, 4, v1
    v_and_b32 v6, 1, v2
    v_lshl_add_u32 v7, v3, 2, v6
    v_cmp_eq_u32 s[30:31], 1, v6
    v_cmp_le_u32 s[32:33], v7, v2
    v_add_u32 v7, 2, v7
    v_cmp_le_u32 s[34:35], v7, v2
    v_cmp_eq_u32 s[36:37], 0, v3
    v_cmp_eq_u32 s[38:39], 1, v3
    v_cmp_gt_u32 s[40:41], 2, v3
    v_mov_b32 v12, 0x0c0c0100
    v_mov_b32 v13, 0x01000c0c
    v_cndmask_b32 v12, v12, v13, s[30:31]
    v_mov_b32 v14, 0x0c0c0302
    v_mov_b32 v13, 0x03020c0c
    v_cndmask_b32 v14, v14, v13, s[30:31]
    v_mov_b32 v13, 0x0c0c0c0c
    v_cndmask_b32 v8, v12, v13, s[32:33]
    v_cndmask_b32 v9, v14, v13, s[34:35]
    v_cndmask_b32 v10, v13, v12, s[32:33]
    v_cndmask_b32 v11, v13, v14, s[34:35]
    """)
    cvt = lambda d, s: f"v_cvt_pk_bf16_f32 v{d}, v{s}, v{s+1}"
    for t, acc in ((1, accB), (0, accA)):
        for h in range(2):
            a(cvt(Kop(t + 1, h), acc(2 + h)))
            a(cvt(Kop(t + 1, h) + 1, acc(2 + h) + 2))
            a(cvt(Vop(h) + 2 + 2 * t, acc(4 + h)))
            a(cvt(Vop(h) + 3 + 2 * t, acc(4 + h) + 2))
        a(cvt(T + 2 * t, acc(6)))
        a(cvt(T + 2 * t + 1, acc(6) + 2))
    a(cvt(T + 4, accH))
    a(cvt(T + 5, accH + 2))
    a(cvt(T + 6, accHR))
    a(cvt(T + 7, accHR + 2))
    a(f"""
    s_mul_i32 s20, s3, {EXSLOT}
    s_add_u32 s20, s20, {EX}
    v_lshlrev_b32 v12, 3, v1
    v_add_u32 v13, s20, v12
    v_lshlrev_b32 v14, 2, v1
    v_add_u32 v14, s20, v14
    v_cndmask_b32 v{Kop(2,0)+2}, 0, v{T+3}, s[40:41]
    v_cndmask_b32 v{Kop(1,0)+2}, 0, v{T+1}, s[40:41]
    v_cndmask_b32 v{T+8}, 0, v{T+7}, s[40:41]
    ds_write_b64 v13, {vr(Kop(2,0),2)} offset:{EXSLOT}
    ds_write_b64 v13, {vr(Kop(2,1),2)} offset:{EXSLOT+512}
    ds_write_b64 v13, {vr(Vop(0)+4,2)} offset:{EXSLOT+1024}
    ds_write_b64 v13, {vr(Vop(1)+4,2)} offset:{EXSLOT+1536}
    ds_write_b32 v14, v{Kop(2,0)+2} offset:{EXSLOT+2048}
    s_lshl_b32 s21, s3, 9
    s_add_u32 s21, s21, {EX}
    v_add_u32 v15, s21, v12
    ds_write_b64 v15, {vr(T+4,2)}
    s_lshl_b32 s21, s3, 6
    s_add_u32 s21, s21, {VRO}
    v_lshlrev_b32 v15, 1, v2
    v_add_u32 v15, s21, v15
    s_mov_b32 exec_lo, 0
    s_mov_b32 exec_hi, 0xffff
    """)
    for t in range(2):
        o = 32 + 32 * t
        a(f"""
        ds_write_b16 v15, v{T+2*t} offset:{o}
        ds_write_b16_d16_hi v15, v{T+2*t} offset:{o+288}
        ds_write_b16 v15, v{T+2*t+1} offset:{o+576}
        ds_write_b16_d16_hi v15, v{T+2*t+1} offset:{o+864}
        """)
    a(f"""
    s_cmp_lg_u32 s3, 0
    s_cbranch_scc1 P1_NOH
    ds_write_b16 v15, v{T+6}
    ds_write_b16_d16_hi v15, v{T+6} offset:288
    ds_write_b16 v15, v{T+7} offset:576
    ds_write_b16_d16_hi v15, v{T+7} offset:864
    s_mov_b64 exec, -1
    ds_write_b32 v14, v{T+8} offset:2048
    """)
    a.label("P1_NOH")
    a("s_mov_b64 exec, -1")
    for t, acc in ((0, accA), (1, accB)):
        for h in range(2):
            a(cvt(Qop(t, h), acc(h)))
            a(cvt(Qop(t, h) + 1, acc(h) + 2))
            a(f"v_cndmask_b32 v{Qop(t,h)+2}, 0, v{T+2*t}, s[{36+2*h}:{37+2*h}]")
            a(f"v_mov_b32 v{Qop(t,h)+3}, 0")
        a(f"v_mov_b32 v{Kop(t+1,1)+2}, v{Kop(t+1,0)+2}")
    for t in range(3):
        for h in range(2):
            a(f"v_mov_b32 v{Kop(t,h)+3}, 0")
    BI = ACC
    a(f"""
    s_or_b32 s21, s16, s3
    s_cmp_eq_u32 s21, 0
    s_cselect_b32 s21, {fbits(-1e30)}, 0
    v_and_b32 v15, 3, v2
    v_mul_u32_u24 v15, 288, v15
    v_lshl_add_u32 v15, v3, 3, v15
    s_lshl_b32 s22, s3, 6
    s_add_u32 s22, s22, {VRO}
    v_add_u32 v15, s22, v15
    s_waitcnt lgkmcnt(0)
    s_barrier
    ds_read_b64 {vr(Kop(0,0),2)}, v13
    ds_read_b64 {vr(Kop(0,1),2)}, v13 offset:512
    ds_read_b32 v{Kop(0,0)+2}, v14 offset:2048
    ds_read_b32 v{Kop(0,1)+2}, v14 offset:2048
    ds_read_b64 {vr(Vop(0),2)}, v13 offset:1024
    ds_read_b64 {vr(Vop(1),2)}, v13 offset:1536
    ds_read_b64 {vr(VRq,2)}, v15
    ds_read_b64 {vr(VRq+2,2)}, v15 offset:32
    ds_read_b64 {vr(VRq+4,2)}, v15 offset:64
    """)
    for q in range(4):
        a(f"v_mov_b32 v{BI+q}, s21")
    So = lambda u: ACC + 4 + 8 * u
    Sp = lambda u: ACC + 8 + 8 * u
    for t in range(2):
        for h in range(2):
            a(f"{MF} {vr(So(2*t+h),4)}, {vr(Kop(t+1,h),4)}, {vr(Qop(t,h),4)}, 0")
    for h in range(2):
        a(f"{MF} {vr(Sp(2+h),4)}, {vr(Kop(1,h),4)}, {vr(Qop(1,h),4)}, 0")
    a("s_waitcnt lgkmcnt(5)")
    for h in range(2):
        a(f"{MF} {vr(Sp(h),4)}, {vr(Kop(0,h),4)}, {vr(Qop(0,h),4)}, {vr(BI,4)}")
    a(f"""
    v_lshrrev_b32 v12, 1, v3
    v_lshlrev_b32 v12, 8, v12
    v_lshl_add_u32 v12, v2, 4, v12
    v_and_b32 v13, 1, v3
    v_lshl_add_u32 v12, v13, 3, v12
    v_lshlrev_b32 v13, 4, v2
    s_lshl_b32 s20, s16, 3
    s_lshl_b32 s21, s3, 1
    s_add_u32 s20, s20, s21
    s_mul_i32 s20, s20, {TILE}
    s_add_u32 s20, s20, {OA}
    s_lshr_b32 s22, s17, 1
    s_lshl_b32 s22, s22, 8
    s_and_b32 s23, s17, 1
    s_lshl_b32 s23, s23, 3
    s_add_u32 s22, s22, s23
    s_add_u32 s22, s22, s20
    s_add_u32 s22, s22, 16384
    s_add_u32 s23, s22, {TILE}
    s_lshl_b32 s21, s17, 10
    s_add_u32 s20, s20, s21
    s_add_u32 s21, s20, {TILE}
    s_mov_b32 s24, {fbits(SCALE_LOG2E)}
    """)
    M = ACC + 40
    order = [2, 3, 0, 1]
    for u in order:
        a(f"""
        v_cndmask_b32 v{So(u)}, v{So(u)}, v{So(u)+1}, s[30:31]
        v_cndmask_b32 v{So(u)+2}, v{So(u)+2}, v{So(u)+3}, s[30:31]
        v_cndmask_b32 v{Sp(u)}, v{Sp(u)}, v{Sp(u)+1}, s[30:31]
        v_cndmask_b32 v{Sp(u)+2}, v{Sp(u)+2}, v{Sp(u)+3}, s[30:31]
        v_cndmask_b32 v{So(u)}, v{Sp(u)}, v{So(u)}, s[32:33]
        v_cndmask_b32 v{So(u)+1}, v{Sp(u)+2}, v{So(u)+2}, s[34:35]
        v_max_f32 v{M+u}, v{So(u)}, v{So(u)+1}
        """)

    def reduce4(op, mid=None):
        a(f"""
        v_permlane32_swap_b32 v{M+2}, v{M+3}
        v_permlane32_swap_b32 v{M}, v{M+1}
        {op} v{M+2}, v{M+2}, v{M+3}
        {op} v{M}, v{M}, v{M+1}
        v_permlane16_swap_b32 v{M}, v{M+2}
        {op} v{M}, v{M}, v{M+2}
        """)
        if mid:
            a(mid)
        a(f"""
        v_mov_b32 v{M+2}, v{M}
        v_permlane16_swap_b32 v{M}, v{M+2}
        v_mov_b32 v{M+1}, v{M}
        v_mov_b32 v{M+3}, v{M+2}
        v_permlane32_swap_b32 v{M}, v{M+1}
        v_permlane32_swap_b32 v{M+2}, v{M+3}
        """)

    reduce4("v_max_f32", f"v_mul_f32 v{M}, s24, v{M}")
    for u in range(4):
        a(f"""
        v_fma_f32 v{So(u)}, v{So(u)}, s24, -v{M+u}
        v_fma_f32 v{So(u)+1}, v{So(u)+1}, s24, -v{M+u}
        """)
    for u in range(4):
        a(f"""
        v_exp_f32 v{So(u)}, v{So(u)}
        v_exp_f32 v{So(u)+1}, v{So(u)+1}
        """)
    for u in range(4):
        a(f"v_add_f32 v{M+u}, v{So(u)}, v{So(u)+1}")
    reduce4("v_add_f32", f"v_rcp_f32 v{M}, v{M}")
    for u in range(4):
        a(f"""
        v_mul_f32 v{So(u)}, v{So(u)}, v{M+u}
        v_mul_f32 v{So(u)+1}, v{So(u)+1}, v{M+u}
        v_cvt_pk_bf16_f32 v{So(u)}, v{So(u)}, v{So(u)+1}
        """)
        for q in range(4):
            a(f"v_perm_b32 v{Sp(u)+q}, v{So(u)}, v{So(u)}, v{8+q}")
    a("s_waitcnt lgkmcnt(0)")
    Om = lambda u: 16 + 4 * u
    Or = lambda u: 32 + 4 * u
    for u in range(4):
        t, h = divmod(u, 2)
        a(f"{MF} {vr(Om(u),4)}, {vr(Vop(h)+2*t,4)}, {vr(Sp(u),4)}, 0")
        a(f"{MF} {vr(Or(u),4)}, {vr(VRq+2*t,4)}, {vr(Sp(u),4)}, 0")
    for u in range(4):
        t, h = divmod(u, 2)
        a(cvt(Om(u), Om(u)))
        a(cvt(Om(u) + 1, Om(u) + 2))
        a(f"buffer_store_dwordx2 {vr(Om(u),2)}, v12, s[8:11], s{20+t} offen offset:{h*512}")
    for t in range(2):
        a(cvt(Or(2 * t), Or(2 * t)))
        a(cvt(Or(2 * t) + 1, Or(2 * t + 1) + 2))
    a("s_mov_b64 exec, 0xffff")
    for t in range(2):
        a(f"buffer_store_dwordx2 {vr(Or(2*t),2)}, v13, s[8:11], s{22+t} offen")
    a.label("P1_END")
    a("s_endpgm")
    return dict(vgpr=152 + 144, accum=152, sgpr=48)
```

```python
from asmlib import *
from layout import *
from k0 import fbits

MF = "v_mfma_f32_16x16x32_bf16"
KVO = 92 * 1024
P2_LDS = 92 * 1024
P3_LDS = KVO + 20 * 1024


def wg_map(a):
    a("""
    s_and_b32 s18, s2, 7
    s_lshr_b32 s19, s2, 3
    s_lshr_b32 s16, s18, 1
    s_lshl_b32 s16, s16, 3
    s_and_b32 s20, s19, 7
    s_add_u32 s16, s16, s20
    s_and_b32 s17, s18, 1
    s_lshl_b32 s17, s17, 2
    s_lshr_b32 s20, s19, 3
    s_add_u32 s17, s17, s20
    """)


def gen_p23(a, p3):
    tag = "P3" if p3 else "P2"
    nt = 6 if p3 else 5
    XF = 16
    WB = [88, 88 + 4 * nt]
    ACC = 88 + 8 * nt
    acc = lambda t: ACC + 4 * t
    EXTRA = ACC + 28
    a(f"""
    s_cmp_ge_u32 s2, 256
    s_cbranch_scc1 {tag}_END
    s_load_dwordx2 s[8:9], s[0:1], 80
    s_mov_b32 s10, {WS_END}
    s_mov_b32 s11, 0x20000
    v_lshrrev_b32 v4, 6, v0
    v_and_b32 v1, 63, v0
    v_readfirstlane_b32 s3, v4
    v_lshlrev_b32 v5, 4, v1
    v_and_b32 v2, 15, v1
    v_lshrrev_b32 v3, 4, v1
    """)
    wg_map(a)
    a(f"""
    s_mul_i32 s20, s17, 92160
    s_lshl_b32 s21, s3, 10
    s_add_u32 s20, s20, s21
    s_add_u32 s20, s20, {WQF if p3 else WOAF}
    s_mov_b32 s26, s21
    s_lshl_b32 s27, s16, 2
    s_add_u32 s27, s27, s3
    s_mul_i32 s28, s27, {TILE}
    s_add_u32 s24, s28, {X1 if p3 else OA}
    """)
    if p3:
        a(f"""
        s_lshr_b32 s29, s17, 2
        s_mul_i32 s22, s29, {18*1024}
        s_add_u32 s22, s22, s21
        s_add_u32 s22, s22, {WKVF}
        s_add_u32 s23, s21, {KVO}
        """)
    a(f"""
    v_lshrrev_b32 v12, 1, v3
    v_lshlrev_b32 v12, 8, v12
    v_lshl_add_u32 v12, v2, 4, v12
    v_and_b32 v13, 1, v3
    v_lshl_add_u32 v12, v13, 3, v12
    s_waitcnt lgkmcnt(0)
    """)
    cnt = []
    n = 0
    for c in range(5):
        ks = range(4 * c, min(4 * c + 4, 18))
        npiece = 5 if c < 4 else 3
        for s in ks:
            a(f"buffer_load_dwordx4 {vr(XF+4*s,4)}, v5, s[8:11], s24 offen offset:{(s%4)*1024}")
            n += 1
        a("s_add_u32 s24, s24, 4096")
        for i in range(npiece):
            a(f"""
            s_mov_b32 m0, s26
            s_add_u32 s26, s26, 4096
            buffer_load_dwordx4 v5, s[8:11], s20 offen lds
            s_add_u32 s20, s20, 4096
            """)
            n += 1
        if p3:
            a(f"""
            s_mov_b32 m0, s23
            s_add_u32 s23, s23, 4096
            buffer_load_dwordx4 v5, s[8:11], s22 offen lds
            s_add_u32 s22, s22, 4096
            """)
            n += 1
        cnt.append(n)
    if p3:
        a(f"""
        v_lshlrev_b32 v14, 4, v3
        s_mul_i32 s20, s17, 320
        s_add_u32 s20, s20, {CSQ}
        s_lshl_b32 s22, s29, 6
        s_add_u32 s22, s22, {CSKV}
        """)
        for t in range(5):
            a(f"buffer_load_dwordx4 {vr(EXTRA+4*t,4)}, v14, s[8:11], s20 offen offset:{t*64}")
        a(f"buffer_load_dwordx4 {vr(EXTRA+20,4)}, v14, s[8:11], s22 offen")
        n += 6
    else:
        a(f"""
        s_mul_i32 s20, s17, 2304
        s_add_u32 s28, s28, s20
        s_add_u32 s20, s28, {XR}
        """)
        for t in range(5):
            a(f"buffer_load_dwordx2 {vr(EXTRA+2*t,2)}, v12, s[8:11], s20 offen offset:{t*512}")
        n += 5
    total = n
    a(f"v_add_u32 v7, 0x10000, v5")

    def reads(s):
        w = WB[s & 1]
        out = []
        for t in range(5):
            seg, off = divmod(s * 5120 + t * 1024, 65536)
            out.append(f"ds_read_b128 {vr(w+4*t,4)}, v{(5,7)[seg]} offset:{off}")
        if p3:
            out.append(f"ds_read_b128 {vr(w+20,4)}, v7 offset:{KVO - 65536 + s*1024}")
        return out

    def sync(s):
        a(f"s_waitcnt vmcnt({total - cnt[s//4]})")
        a("s_barrier")

    sync(0)
    for r in reads(0):
        a(r)
    for s in range(18):
        w = WB[s & 1]
        c = (lambda r: vr(r, 4)) if s > 0 else (lambda r: "0")
        nxt = reads(s + 1) if s + 1 < 18 else []
        if p3:
            a(f"{MF} {vr(acc(6),4)}, {vr(XF+4*s,4)}, {vr(XF+4*s,4)}, {c(acc(6))}")
        if nxt and (s + 1) % 4 == 0:
            a("s_waitcnt lgkmcnt(0)")
            for t in range(nt):
                a(f"{MF} {vr(acc(t),4)}, {vr(w+4*t,4)}, {vr(XF+4*s,4)}, {c(acc(t))}")
            sync(s + 1)
            for r in nxt:
                a(r)
            continue
        for t in range(nt):
            if nxt:
                a(nxt[t])
            a(f"s_waitcnt lgkmcnt({nt - 1 - t + (t + 1 if nxt else 0)})")
            a(f"{MF} {vr(acc(t),4)}, {vr(w+4*t,4)}, {vr(XF+4*s,4)}, {c(acc(t))}")

    if not p3:
        a(f"""
        s_mov_b32 s29, 0xffff0000
        s_add_u32 s20, s28, {X1}
        s_waitcnt vmcnt(0)
        """)
        for t in range(5):
            for q in range(2):
                r = EXTRA + 2 * t + q
                a(f"""
                v_lshlrev_b32 v8, 16, v{r}
                v_and_b32 v9, s29, v{r}
                v_add_f32 v8, v8, v{acc(t)+2*q}
                v_add_f32 v9, v9, v{acc(t)+2*q+1}
                v_cvt_pk_bf16_f32 v{r}, v8, v9
                """)
            if t == 4:
                a("s_mov_b32 exec_hi, 0")
            a(f"buffer_store_dwordx2 {vr(EXTRA+2*t,2)}, v12, s[8:11], s20 offen offset:{t*512}")
        a.label("P2_END")
        a("s_endpgm")
        return dict(vgpr=EXTRA + 10, sgpr=48)

    G = acc(6)
    a(f"""
    v_and_b32 v6, 1, v2
    v_cmp_eq_u32 s[30:31], 1, v6
    v_and_b32 v6, 2, v2
    v_cmp_eq_u32 s[32:33], 2, v6
    v_lshrrev_b32 v6, 2, v2
    v_lshl_add_u32 v6, v6, 4, v2
    v_lshlrev_b32 v6, 2, v6
    v_cndmask_b32 v{G}, v{G}, v{G+1}, s[30:31]
    v_cndmask_b32 v{G+2}, v{G+2}, v{G+3}, s[30:31]
    v_cndmask_b32 v{G}, v{G}, v{G+2}, s[32:33]
    ds_bpermute_b32 v9, v6, v{G}
    v_mul_f32 v8, {fbits(-1.0/576)}, v{acc(4)+2}
    v_lshrrev_b32 v10, 3, v2
    v_lshlrev_b32 v11, 10, v10
    v_lshlrev_b32 v10, 13, v10
    v_lshrrev_b32 v14, 1, v3
    v_lshl_add_u32 v10, v14, 9, v10
    v_and_b32 v14, 7, v2
    v_lshl_add_u32 v10, v14, 4, v10
    v_lshl_add_u32 v10, v13, 3, v10
    v_lshl_add_u32 v11, v3, 5, v11
    v_lshl_add_u32 v11, v14, 2, v11
    s_lshl_b32 s20, s27, 14
    s_lshl_b32 s21, s17, 10
    s_add_u32 s20, s20, s21
    s_add_u32 s20, s20, {QF}
    s_lshl_b32 s21, s27, 11
    s_lshl_b32 s22, s17, 7
    s_add_u32 s21, s21, s22
    s_add_u32 s21, s21, {QR}
    s_waitcnt lgkmcnt(0)
    v_mul_f32 v9, {fbits(1.0/576)}, v9
    v_fma_f32 v9, -v8, v8, v9
    v_max_f32 v9, 0, v9
    v_add_f32 v9, {fbits(EPS)}, v9
    v_rsq_f32 v9, v9
    s_waitcnt vmcnt(0)
    v_mul_f32 v15, {fbits(SCALE_LOG2E)}, v9
    """)
    for t in range(4):
        for r in range(4):
            a(f"v_fmac_f32 v{acc(t)+r}, v8, v{EXTRA+4*t+r}")
        for r in range(4):
            a(f"v_mul_f32 v{acc(t)+r}, v15, v{acc(t)+r}")
        a(f"""
        v_cvt_pk_bf16_f32 v{acc(t)}, v{acc(t)}, v{acc(t)+1}
        v_cvt_pk_bf16_f32 v{acc(t)+1}, v{acc(t)+2}, v{acc(t)+3}
        buffer_store_dwordx2 {vr(acc(t),2)}, v10, s[8:11], s20 offen offset:{t*128}
        """)
    R = acc(4)
    a(f"""
    v_fmac_f32 v{R}, v8, v{EXTRA+16}
    v_fmac_f32 v{R+1}, v8, v{EXTRA+17}
    v_mul_f32 v{R}, v15, v{R}
    v_mul_f32 v{R+1}, v15, v{R+1}
    v_cvt_pk_bf16_f32 v{R}, v{R}, v{R+1}
    buffer_store_dword v{R}, v11, s[8:11], s21 offen
    s_and_b32 s22, s17, 3
    s_cmp_lg_u32 s22, s3
    s_cbranch_scc1 P3_END
    v_fmac_f32 v{R+3}, v8, v{EXTRA+19}
    v_mul_f32 v{R+3}, v9, v{R+3}
    """)
    K = acc(5)
    for r in range(4):
        a(f"v_fmac_f32 v{K+r}, v8, v{EXTRA+20+r}")
    for r in range(4):
        a(f"v_mul_f32 v{K+r}, v9, v{K+r}")
    a(f"""
    v_cvt_pk_bf16_f32 v16, v{K}, v{K+1}
    v_cvt_pk_bf16_f32 v17, v{K+2}, v{K+3}
    v_cvt_pk_bf16_f32 v18, v{R+3}, v{R+3}
    s_cmp_lg_u32 s29, 0
    s_cbranch_scc1 P3_V
    s_lshr_b32 s20, s27, 1
    s_and_b32 s21, s27, 1
    s_lshl_b32 s22, s20, 10
    s_lshl_b32 s23, s21, 8
    s_add_u32 s22, s22, s23
    s_add_u32 s22, s22, {KM}
    v_lshrrev_b32 v10, 1, v3
    v_lshlrev_b32 v10, 9, v10
    v_lshl_add_u32 v10, v2, 4, v10
    v_lshl_add_u32 v10, v13, 3, v10
    buffer_store_dwordx2 v[16:17], v10, s[8:11], s22 offen
    s_lshr_b32 s22, s20, 3
    s_lshl_b32 s22, s22, 10
    s_lshl_b32 s23, s21, 9
    s_add_u32 s22, s22, s23
    s_and_b32 s23, s20, 7
    s_lshl_b32 s23, s23, 2
    s_add_u32 s22, s22, s23
    s_add_u32 s22, s22, {KR}
    v_lshlrev_b32 v10, 5, v2
    v_lshl_add_u32 v10, v3, 1, v10
    v_mul_f32 v19, v{K}, v{K}
    v_fmac_f32 v19, v{K+1}, v{K+1}
    v_fmac_f32 v19, v{K+2}, v{K+2}
    v_fmac_f32 v19, v{K+3}, v{K+3}
    s_mov_b32 exec_hi, 0
    buffer_store_short v18, v10, s[8:11], s22 offen
    v_fmac_f32 v19, v{R+3}, v{R+3}
    s_mov_b32 exec_hi, -1
    v_mov_b32 v20, v19
    v_permlane32_swap_b32 v19, v20
    v_add_f32 v19, v19, v20
    v_mov_b32 v20, v19
    v_permlane16_swap_b32 v19, v20
    v_add_f32 v19, v19, v20
    """)
    for sh in (8, 4, 2, 1):
        a(f"v_max_f32_dpp v19, v19, v19 row_ror:{sh} row_mask:0xf bank_mask:0xf")
    a(f"""
    s_lshl_b32 s22, s27, 2
    s_add_u32 s22, s22, {KN}
    v_mov_b32 v10, 0
    s_mov_b64 exec, 1
    buffer_store_dword v19, v10, s[8:11], s22 offen
    s_endpgm
    """)
    a.label("P3_V")
    a(f"""
    s_lshl_b32 s22, s27, 10
    s_add_u32 s22, s22, {VF}
    v_lshrrev_b32 v10, 3, v2
    v_lshlrev_b32 v10, 9, v10
    v_lshl_add_u32 v10, v14, 1, v10
    v_lshl_add_u32 v11, v3, 4, v10
    v_lshl_add_u32 v10, v3, 6, v10
    buffer_store_short v16, v10, s[8:11], s22 offen
    buffer_store_short_d16_hi v16, v10, s[8:11], s22 offen offset:16
    buffer_store_short v17, v10, s[8:11], s22 offen offset:32
    buffer_store_short_d16_hi v17, v10, s[8:11], s22 offen offset:48
    s_mov_b32 exec_lo, 0
    buffer_store_short v18, v11, s[8:11], s22 offen offset:{14*16}
    """)
    a.label("P3_END")
    a("s_endpgm")
    return dict(vgpr=EXTRA + 24, sgpr=48)
```

```python
import os
from asmlib import *
from layout import *
from k0 import fbits

QL = 0
RED = 16384
OF = RED + 24576
MISC = OF + 12288
FLG = MISC
DUMMY = MISC + 64
STAT = MISC + 512
MX = MISC + 1024
ZEND = RED + 40960
WOL = ZEND
P4_LDS = WOL + 4 * 13312 + 4 * 10240
THR = 40.0

M32 = "v_mfma_f32_32x32x16_bf16"
M8 = "v_mfma_f32_32x32x8_bf16"
SM = "v_smfmac_f32_32x32x32_bf16"
M16 = "v_mfma_f32_16x16x32_bf16"
M16S = "v_mfma_f32_16x16x16_bf16"


def gen_p4(a):
    vIDX, vL16, vRED, vNR, vND, vOW, vOR, vWA, vWC = 2, 3, 4, 5, 6, 7, 8, 9, 10
    T0 = 12
    SB = [16, 32, 48]
    OB = [64, 80]
    KMr = lambda t: 96 + 4 * t
    KRr = 128
    Vr = lambda i: 136 + 4 * i
    QB = [200, 208]
    OUT = lambda i: 216 + 4 * i
    OFr = 236
    WFr = 246

    a.label("P4_BODY")
    a(f"""
    s_cmp_ge_u32 s2, 256
    s_cbranch_scc1 P4_END
    s_load_dwordx2 s[8:9], s[0:1], 80
    s_load_dwordx2 s[12:13], s[0:1], 64
    s_mov_b32 s10, {WS_END}
    s_mov_b32 s11, 0x20000
    s_mov_b32 s14, {FMSZ}
    s_mov_b32 s15, 0x20000
    v_lshrrev_b32 v12, 6, v0
    v_and_b32 v1, 63, v0
    v_readfirstlane_b32 s3, v12
    v_lshlrev_b32 v{vL16}, 4, v1
    v_and_b32 v11, 31, v1
    v_lshlrev_b32 v12, 2, v11
    v_lshlrev_b32 v13, 3, v1
    v_lshlrev_b32 v14, 5, v1
    s_lshl_b32 s16, s3, 10
    s_lshl_b32 s17, s2, 13
    s_add_u32 s17, s17, s16
    s_add_u32 s17, s17, {QF}
    s_lshl_b32 s18, s2, 10
    s_lshl_b32 s19, s3, 7
    s_add_u32 s18, s18, s19
    s_add_u32 s18, s18, {QR}
    s_mov_b32 s19, {KN}
    s_add_u32 s20, s16, {KR}
    s_lshl_b32 s21, s3, 13
    s_add_u32 s21, s21, {KM}
    s_add_u32 s22, s21, 4096
    s_lshl_b32 s23, s3, 14
    s_add_u32 s23, s23, {VF}
    """)
    for i in range(8):
        a(f"v_mov_b32 v{KRr+i}, 0x3f803f80")
    QT = 16
    a(f"""
    s_waitcnt lgkmcnt(0)
    buffer_load_dwordx4 v[16:19], v{vL16}, s[8:11], s17 offen
    buffer_load_dword v20, v12, s[8:11], s18 offen
    buffer_load_dwordx2 v[22:23], v13, s[8:11], s19 offen
    s_mov_b32 exec_hi, 0
    buffer_load_dwordx4 {vr(KRr,4)}, v14, s[8:11], s20 offen
    buffer_load_dwordx4 {vr(KRr+4,4)}, v14, s[8:11], s20 offen offset:16
    s_mov_b32 exec_hi, -1
    """)
    seq = ["q", "qr", "kn", "kr", "kr"]

    def ldk(t):
        a(f"buffer_load_dwordx4 {vr(KMr(t),4)}, v{vL16}, s[8:11], s{21 + t//4} offen offset:{(t%4)*1024}")
        seq.append(("k", t))

    def ldv(i):
        a(f"buffer_load_dwordx4 {vr(Vr(i),4)}, v{vL16}, s[8:11], s23 offen offset:{(i%4)*1024}")
        if i % 4 == 3:
            a("s_add_u32 s23, s23, 4096")
        seq.append(("v", i))

    ldk(0)
    ldk(1)
    for t in range(8):
        if t + 2 < 8:
            ldk(t + 2)
        ldv(2 * t)
        ldv(2 * t + 1)
    a(f"""
    s_mul_i32 s24, s3, {5*2560}
    s_mul_i32 s25, s3, 13312
    s_mul_i32 s26, s3, {4*2560}
    s_add_u32 s26, s26, {4*2560}
    s_mul_i32 s27, s3, 10240
    s_add_u32 s27, s27, {4*13312 - 4*10240}
    s_cmp_lt_u32 s3, 4
    s_cselect_b32 s24, s24, s26
    s_cselect_b32 s25, s25, s27
    s_mov_b32 s44, s24
    s_add_u32 s24, s24, {WOBF}
    s_add_u32 s25, s25, {WOL}
    """)

    def dma(qt, first, n):
        out = []
        i = 0
        while i < n:
            k = min(4, n - i)
            p = first + i
            out.append(f"s_add_u32 s26, s25, {p*1024}\ns_mov_b32 m0, s26\ns_add_u32 s27, s24, {qt*36*2560 + p*1024}\n"
                       f"buffer_load_dwordx4 v{vL16}, s[8:11], s27 offen lds")
            for q in range(1, k):
                out.append(f"buffer_load_dwordx4 v{vL16}, s[8:11], s27 offen offset:{q*1024} lds")
            i += k
        return out

    for d in dma(0, 0, 10):
        a(d)
        seq.append("dma")
    NV = len(seq)
    waitfor = lambda key: f"s_waitcnt vmcnt({NV - 1 - seq.index(key)})"

    a(f"""
    v_mov_b32 v24, 0
    v_mov_b32 v25, 0
    v_mov_b32 v26, 0
    v_mov_b32 v27, 0
    v_lshlrev_b32 v15, 4, v0
    """)
    for i in range(5):
        a(f"ds_write_b128 v15, v[24:27] offset:{RED + i*8192}")
    a(f"""
    v_mov_b32 v{vIDX}, 0xdddddddd
    v_lshrrev_b32 v15, 5, v1
    v_lshl_add_u32 v{vRED}, v15, 9, v12
    v_and_b32 v28, 3, v1
    s_lshl_b32 s26, s3, 2
    v_add_u32 v28, s26, v28
    v_lshrrev_b32 v29, 2, v1
    v_lshlrev_b32 v{vND}, 2, v28
    v_lshl_add_u32 v{vNR}, v29, 8, v{vND}
    v_mul_u32_u24 v{vOW}, 48, v28
    v_lshl_add_u32 v{vOW}, v29, 2, v{vOW}
    v_mov_b32 v30, 40
    v_cmp_gt_u32 s[30:31], 9, v29
    v_cndmask_b32 v{vOW}, v30, v{vOW}, s[30:31]
    v_lshrrev_b32 v28, 4, v1
    v_and_b32 v29, 7, v1
    v_lshl_add_u32 v28, v28, 3, v29
    v_mul_u32_u24 v{vOR}, 48, v28
    v_add_u32 v{vWA}, s25, v{vL16}
    v_add_u32 v{vWC}, s25, v13
    v_cmp_gt_u32 s[32:33], 32, v1
    v_add_u32 v31, s16, v{vL16}
    v_add_u32 v31, s16, v31
    {waitfor("kn")}
    v_max_f32 v22, v22, v23
    v_dot2_f32_bf16 v21, v16, v16, 0
    v_dot2_f32_bf16 v21, v17, v17, v21
    v_dot2_f32_bf16 v21, v18, v18, v21
    v_dot2_f32_bf16 v21, v19, v19, v21
    ds_write_b128 v31, v[16:19] offset:{QL}
    """)
    for sh in (8, 4, 2, 1):
        a(f"v_max_f32_dpp v22, v22, v22 row_ror:{sh} row_mask:0xf bank_mask:0xf")
    a(f"""
    v_mov_b32 v23, v21
    v_mov_b32 v28, v22
    v_permlane32_swap_b32 v21, v23
    v_permlane32_swap_b32 v22, v28
    v_add_f32 v21, v21, v23
    v_max_f32 v22, v22, v28
    v_dot2_f32_bf16 v21, v20, v20, v21
    v_mov_b32 v28, v22
    v_permlane16_swap_b32 v22, v28
    v_max_f32 v22, v22, v28
    v_mul_f32 v21, v21, v22
    v_sqrt_f32 v21, v21
    v_mov_b32 v22, {fbits(THR)}
    v_cmp_nge_f32 vcc, v22, v21
    """)

    def put_m(mreg):
        a(f"""
        v_cvt_pk_bf16_f32 v22, -v{mreg}, -v{mreg}
        v_lshlrev_b32 v22, 16, v22
        v_sub_f32 v23, -v{mreg}, v22
        v_cvt_pk_bf16_f32 v22, v22, v23
        v_cndmask_b32 v24, v22, v20, s[32:33]
        v_mov_b32 v25, 0
        v_mov_b32 v26, 0
        v_mov_b32 v27, v24
        ds_write_b128 v31, v[24:27] offset:{QL+1024}
        """)

    put_m(21)
    a(f"""
    s_cmp_lg_u64 vcc, 0
    s_cselect_b32 s26, 1, 0
    v_mov_b32 v28, s26
    s_lshl_b32 s27, s3, 2
    v_mov_b32 v29, s27
    s_waitcnt lgkmcnt(0)
    s_barrier
    ds_write_b32 v29, v28 offset:{FLG}
    v_and_b32 v29, 7, v1
    v_lshlrev_b32 v29, 2, v29
    s_waitcnt lgkmcnt(0)
    s_barrier
    ds_read_b32 v28, v29 offset:{FLG}
    s_waitcnt lgkmcnt(0)
    v_cmp_ne_u32 vcc, 0, v28
    s_nop 4
    s_cbranch_vccnz P4_FB
    """)
    a.label("P4_GO")

    def qread(qt):
        q = QB[qt & 1]
        return [f"ds_read_b128 {vr(q,4)}, v{vL16} offset:{QL + qt*2048}",
                f"ds_read_b128 {vr(q+4,4)}, v{vL16} offset:{QL + qt*2048 + 1024}"]

    def qk1(tau):
        qt, t = divmod(tau, 8)
        return f"{M32} {vr(SB[tau%3],16)}, {vr(KMr(t),4)}, {vr(QB[qt&1],4)}, 0"

    def qk2(tau):
        qt, t = divmod(tau, 8)
        s = vr(SB[tau % 3], 16)
        return f"{M8} {s}, {vr(KRr + (t & ~1),2)}, {vr(QB[qt&1] + 4 + 2*(t&1),2)}, {s}"

    def smf(tau, h):
        qt, t = divmod(tau, 8)
        return f"{SM} {vr(OB[qt&1],16)}, {vr(Vr(2*t+h),4)}, {vr(SB[tau%3]+8*h,8)}, v{vIDX}"

    def ozero(qt, qsrc):
        q = QB[qsrc & 1]
        return f"{M8} {vr(OB[qt&1],16)}, {vr(q+4,2)}, {vr(q+6,2)}, 0"

    def flush(qt):
        return [f"ds_add_f32 v{vRED}, v{OB[qt&1]+i} offset:{RED + qt*3072 + (8*(i>>2) + (i&3))*128}" for i in range(11)]

    def norm_read(qt):
        return [f"ds_read_b32 v{T0+2}, v{vND} offset:{RED + qt*3072 + 18*128}",
                f"ds_read_b32 v{T0}, v{vNR} offset:{RED + qt*3072}",
                f"ds_read_b32 v{T0+1}, v{vNR} offset:{RED + qt*3072 + 128}"]

    def norm_calc(qt):
        return [f"v_rcp_f32 v{T0+2}, v{T0+2}",
                f"v_mul_f32 v{T0}, v{T0}, v{T0+2}",
                f"v_mul_f32 v{T0+1}, v{T0+1}, v{T0+2}",
                f"v_cvt_pk_bf16_f32 v{T0}, v{T0}, v{T0+1}",
                f"ds_write_b32 v{vOW}, v{T0} offset:{OF + qt*1536}"]

    def of_read(qt):
        o = OF + qt * 1536
        return [f"ds_read_b128 {vr(OFr,4)}, v{vOR} offset:{o}",
                f"ds_read_b128 {vr(OFr+4,4)}, v{vOR} offset:{o+16}",
                f"ds_read_b64 {vr(OFr+8,2)}, v{vOR} offset:{o+32}"]

    def wo_read(i, w=WFr):
        return [f"ds_read_b128 {vr(w,4)}, v{vWA} offset:{i*2560}",
                f"ds_read_b128 {vr(w+4,4)}, v{vWA} offset:{i*2560+1024}",
                f"ds_read_b64 {vr(w+8,2)}, v{vWC} offset:{i*2560+2048}"]

    def wo_mma(i, first, w=WFr):
        o = vr(OUT(i), 4)
        return [f"{M16} {o}, {vr(w,4)}, {vr(OFr,4)}, {'0' if first else o}",
                f"{M16} {o}, {vr(w+4,4)}, {vr(OFr+4,4)}, {o}",
                f"{M16S} {o}, {vr(w+8,2)}, {vr(OFr+8,2)}, {o}"]

    for r in qread(0):
        a(r)
    a(f"""
    {waitfor(("k", 1))}
    s_waitcnt lgkmcnt(0)
    {ozero(0, 0)}
    {qk1(0)}
    {qk1(1)}
    {qk2(0)}
    {qk2(1)}
    """)
    skipn = 0
    for tau in range(64):
        qt, t = divmod(tau, 8)
        X = SB[tau % 3]
        pq = qt - 1
        extra = {k: [] for k in range(-1, 17)}
        if t == 0 and qt + 1 < 8:
            extra[1] += qread(qt + 1)
        if qt == 0 and t == 3:
            extra[1] += ["s_waitcnt lgkmcnt(0)", ozero(1, 0)]
        if pq >= 0:
            if t == 0:
                lab = f"P4_SK{skipn}"
                skipn += 1
                extra[5] += ["s_cmp_ge_u32 s3, 4", f"s_cbranch_scc1 {lab}"] + dma(pq, 10, 3) + [lab + ":"]
            if t == 1:
                fl = flush(pq)
                for i, f in enumerate(fl):
                    extra[i] += [f]
                extra[15] += ["s_waitcnt lgkmcnt(0)", "s_barrier"] + norm_read(pq)
            if t == 2:
                if qt + 1 < 8:
                    extra[1] += [ozero(qt + 1, qt)]
                nc = norm_calc(pq)
                extra[5] += ["s_waitcnt lgkmcnt(0)", nc[0]]
                extra[6] += nc[1:3]
                extra[7] += nc[3:]
                extra[15] += ["s_waitcnt lgkmcnt(0)", "s_barrier"] + of_read(pq) + ["s_waitcnt vmcnt(0)"] + wo_read(0)
            if t >= 3:
                i = t - 3
                mm = wo_mma(i, pq == 0)
                if i < 4:
                    extra[4] += ["s_waitcnt lgkmcnt(0)", mm[0]]
                    extra[8] += [mm[1]]
                    extra[13] += [mm[2]]
                    extra[15] += wo_read(i + 1)
                else:
                    lab = f"P4_SK{skipn}"
                    skipn += 1
                    extra[5] += ["s_waitcnt lgkmcnt(0)", "s_cmp_ge_u32 s3, 4", f"s_cbranch_scc1 {lab}"] + mm + [lab + ":"]
                if t in (5, 7):
                    dd = dma(qt, 0 if t == 5 else 5, 5)
                    for k, d in enumerate(dd):
                        extra[1 + 2 * k] += [d]
        if tau == 62:
            extra[13] += [f"""v_and_b32 v{T0}, 7, v1
            v_lshlrev_b32 v{T0}, 4, v{T0}
            v_lshrrev_b32 v{T0+1}, 5, v1
            v_lshl_add_u32 v{T0}, v{T0+1}, 8, v{T0}
            v_bfe_u32 v{T0+1}, v1, 4, 1
            v_lshl_add_u32 v11, v{T0+1}, 3, v{T0}
            s_lshr_b32 s28, s2, 1
            s_mul_i32 s28, s28, {TILE}
            s_and_b32 s29, s2, 1
            s_lshl_b32 s29, s29, 7
            s_add_u32 s28, s28, s29
            s_mul_hi_u32 s29, s44, {(1 << 32) // 5 + 1}
            s_add_u32 s28, s28, s29
            s_add_u32 s29, s28, {X1}"""] + [
                f"buffer_load_dwordx2 {vr(KMr(0)+2*i,2)}, v11, s[8:11], s29 offen offset:{i*512}" for i in range(5)]
        slots = {3: smf(tau - 1, 1) if tau > 0 else None,
                 6: qk1(tau + 2) if tau + 2 < 64 else None,
                 11: smf(tau, 0),
                 15: qk2(tau + 2) if tau + 2 < 64 else None}
        pre = {}
        if 0 < tau <= 8:
            pre[3] = waitfor(("v", 2 * (tau - 1) + 1))
        if tau < 6:
            pre[6] = waitfor(("k", tau + 2))
        if tau < 8:
            pre[11] = waitfor(("v", 2 * tau))
        for k in range(16):
            a(f"v_exp_f32 v{X+k}, v{X+k}")
            if k in slots and slots[k]:
                if k in pre:
                    a(pre[k])
                a(slots[k])
            for e in extra[k]:
                a(e)
    a(smf(63, 1))
    a(f"""
    s_cmp_ge_u32 s3, 4
    s_cbranch_scc1 P4_SKT
    """)
    for d in dma(7, 10, 3):
        a(d)
    a.label("P4_SKT")
    for f in flush(7):
        a(f)
    a("s_waitcnt lgkmcnt(0)\ns_barrier")
    for r in norm_read(7):
        a(r)
    a("s_waitcnt lgkmcnt(0)")
    for r in norm_calc(7):
        a(r)
    WT = lambda i: 16 + 10 * i
    a("s_waitcnt vmcnt(0)")
    for i in range(5):
        for r in wo_read(i, WT(i)):
            a(r)
    a("s_waitcnt lgkmcnt(0)\ns_barrier")
    if os.environ.get("P4DBG"):
        a(f"""
        s_mov_b32 s10, {64 << 20}
        v_lshlrev_b32 v80, 4, v0
        s_mul_i32 s26, s2, 40960
        s_add_u32 s26, s26, {32 << 20}
        """)
        for i in range(5):
            a(f"""
            ds_read_b128 v[84:87], v80 offset:{RED + i*8192}
            s_waitcnt lgkmcnt(0)
            buffer_store_dwordx4 v[84:87], v80, s[8:11], s26 offen
            s_add_u32 s26, s26, 8192
            s_waitcnt vmcnt(0)
            """)
    for r in of_read(7):
        a(r)
    a("s_waitcnt lgkmcnt(0)")
    for k in range(3):
        for i in range(5):
            a(wo_mma(i, False, WT(i))[k])
    RS = KMr(0)
    a(f"""
    s_mov_b32 s29, 0xffff0000
    s_cmp_lt_u32 s3, 4
    s_cselect_b64 s[34:35], -1, 0
    v_mov_b32 v12, 0
    v_mov_b32 v13, 0
    """)
    for i in range(5):
        for q in range(2):
            r = RS + 2 * i + q
            o = OUT(i) + 2 * q
            a(f"""
            v_lshlrev_b32 v14, 16, v{r}
            v_and_b32 v15, s29, v{r}
            v_add_f32 v14, v14, v{o}
            v_add_f32 v15, v15, v{o+1}
            v_cvt_pk_bf16_f32 v{r}, v14, v15
            """)
            if i == 4:
                a(f"v_cndmask_b32 v{r}, 0, v{r}, s[34:35]")
    a(f"""
    s_cmp_eq_u32 s45, 0
    s_cbranch_scc1 P4_MID
    v_and_b32 v14, 7, v1
    v_mul_u32_u24 v14, 1152, v14
    v_lshrrev_b32 v15, 4, v1
    v_lshl_add_u32 v14, v15, 3, v14
    s_mul_i32 s28, s2, {8*1152}
    s_mul_hi_u32 s29, s44, {(1 << 32) // 80 + 1}
    s_add_u32 s28, s28, s29
    s_mov_b32 exec_lo, 0x00ff00ff
    s_mov_b32 exec_hi, 0x00ff00ff
    """)
    for i in range(4):
        a(f"buffer_store_dwordx2 {vr(RS+2*i,2)}, v14, s[12:15], s28 offen offset:{i*32}")
    a(f"""
    s_cmp_ge_u32 s3, 4
    s_cbranch_scc1 P4_END
    buffer_store_dwordx2 {vr(RS+8,2)}, v14, s[12:15], s28 offen offset:128
    s_endpgm
    """)
    a.label("P4_MID")
    a("s_mov_b32 s26, 0x3f803f80")
    for r in range(RS, RS + 10):
        a(f"v_dot2_f32_bf16 v12, v{r}, s26, v12")
        a(f"v_dot2_f32_bf16 v13, v{r}, v{r}, v13")
    a(f"""
    s_mov_b32 s36, 0x00ff00ff
    s_mov_b32 s37, 0x00ff00ff
    s_and_b64 s[38:39], s[36:37], s[34:35]
    s_add_u32 s27, s28, {XR}
    v_mov_b32 v14, v12
    v_mov_b32 v15, v13
    v_permlane32_swap_b32 v12, v14
    v_permlane32_swap_b32 v13, v15
    v_add_f32 v12, v12, v14
    v_add_f32 v13, v13, v15
    v_mov_b32 v14, v12
    v_mov_b32 v15, v13
    v_permlane16_swap_b32 v12, v14
    v_permlane16_swap_b32 v13, v15
    v_add_f32 v12, v12, v14
    v_add_f32 v13, v13, v15
    v_and_b32 v14, 7, v1
    v_lshlrev_b32 v14, 6, v14
    s_lshl_b32 s26, s3, 3
    v_add_u32 v15, s26, v14
    ds_write_b64 v15, v[12:13] offset:{STAT}
    s_mov_b64 exec, s[36:37]
    """)
    for i in range(4):
        a(f"buffer_store_dwordx2 {vr(RS+2*i,2)}, v11, s[8:11], s27 offen offset:{i*512}")
    a(f"""
    s_cmp_ge_u32 s3, 4
    s_cbranch_scc1 P4_M2
    buffer_store_dwordx2 {vr(RS+8,2)}, v11, s[8:11], s27 offen offset:2048
    """)
    a.label("P4_M2")
    a(f"""
    s_mov_b64 exec, -1
    s_waitcnt lgkmcnt(0)
    s_barrier
    """)
    for i in range(4):
        a(f"ds_read_b128 {vr(16+4*i,4)}, v14 offset:{STAT + 16*i}")
    a("s_waitcnt lgkmcnt(0)")
    for i in range(1, 8):
        a(f"v_add_f32 v16, v16, v{16+2*i}")
        a(f"v_add_f32 v17, v17, v{17+2*i}")
    a(f"""
    v_mul_f32 v16, {fbits(-1.0/576)}, v16
    v_mul_f32 v17, {fbits(1.0/576)}, v17
    v_fma_f32 v17, -v16, v16, v17
    v_max_f32 v17, 0, v17
    v_add_f32 v17, {fbits(EPS)}, v17
    v_rsq_f32 v17, v17
    s_add_u32 s27, s28, {XN}
    v_mul_f32 v16, v16, v17
    """)
    for r in range(10):
        a(f"""
        v_lshlrev_b32 v14, 16, v{RS+r}
        v_and_b32 v15, s29, v{RS+r}
        v_fma_f32 v14, v14, v17, v16
        v_fma_f32 v15, v15, v17, v16
        v_cvt_pk_bf16_f32 v{32+r}, v14, v15
        """)
    a("s_mov_b64 exec, s[36:37]")
    for i in range(4):
        a(f"buffer_store_dwordx2 {vr(32+2*i,2)}, v11, s[8:11], s27 offen offset:{i*512}")
    a(f"""
    s_cmp_ge_u32 s3, 4
    s_cbranch_scc1 P4_END
    buffer_store_dwordx2 v[40:41], v11, s[8:11], s27 offen offset:2048
    """)
    a.label("P4_END")
    a("s_endpgm")

    a.label("P4_FB")
    a(f"""
    v_mov_b32 v21, 0
    """)
    put_m(21)
    a(f"""
    s_lshl_b32 s26, s3, 7
    v_add_u32 v30, s26, v12
    v_mov_b32 v28, 0xff800000
    ds_write_b32 v30, v28 offset:{MX}
    s_waitcnt vmcnt(0) lgkmcnt(0)
    s_barrier
    v_mov_b32 v28, v{vL16}
    v_mov_b32 v29, v12
    s_mov_b32 s26, 0
    """)
    a.label("P4_FBL")
    a(f"""
    ds_read_b128 {vr(QB[0],4)}, v28 offset:{QL}
    ds_read_b128 {vr(QB[0]+4,4)}, v28 offset:{QL+1024}
    v_mov_b32 v21, 0xff800000
    s_waitcnt lgkmcnt(0)
    """)
    for t in range(8):
        s = vr(32, 16)
        a(f"{M32} {s}, {vr(KMr(t),4)}, {vr(QB[0],4)}, 0")
        a(f"{M8} {s}, {vr(KRr + (t & ~1),2)}, {vr(QB[0] + 4 + 2*(t&1),2)}, {s}")
        for i in range(8):
            a(f"v_max3_f32 v21, v{32+2*i}, v{33+2*i}, v21")
    a(f"""
    ds_max_f32 v29, v21 offset:{MX}
    v_add_u32 v28, 2048, v28
    v_add_u32 v29, 128, v29
    s_add_u32 s26, s26, 1
    s_cmp_lt_u32 s26, 8
    s_cbranch_scc1 P4_FBL
    s_waitcnt lgkmcnt(0)
    s_barrier
    ds_read_b32 v21, v30 offset:{MX}
    s_waitcnt lgkmcnt(0)
    """)
    put_m(21)
    a(f"""
    s_waitcnt lgkmcnt(0)
    s_barrier
    s_branch P4_GO
    """)
    return dict(vgpr=256, sgpr=48)
```

```python
import sys, os
sys.path.insert(0, os.path.dirname(__file__))
from asmlib import *
from layout import *
import k0, p1, p23, p4

NAME = "interleave_layers__sliding_local_dilated__grouped_kv_mqa__prompt"
REF = f"cdna_kernels/{NAME}.s.ref"


def kd(name, vgpr, sgpr, accum=None):
    accum = accum or (vgpr + 3) // 4 * 4
    return f""".p2align 6
.amdhsa_kernel {name}
  .amdhsa_next_free_vgpr {vgpr}
  .amdhsa_next_free_sgpr {sgpr}
  .amdhsa_accum_offset {accum}
  .amdhsa_group_segment_fixed_size 0
  .amdhsa_kernarg_size 88
  .amdhsa_user_sgpr_count 2
  .amdhsa_user_sgpr_kernarg_segment_ptr 1
  .amdhsa_system_sgpr_workgroup_id_x 1
.end_amdhsa_kernel
"""


def entry(a, name):
    a.fence()
    a.raw(f".globl {name}\n.p2align 8\n.type {name},@function")
    a.label(name)


def build(path, launches=None):
    a = Asm()
    kds = []
    entry(a, "k0_kernel"); kds.append(kd("k0_kernel", **k0.gen_k0(a)))
    entry(a, "p1_kernel"); kds.append(kd("p1_kernel", **p1.gen_p1(a)))
    entry(a, "p2_kernel"); kds.append(kd("p2_kernel", **p23.gen_p23(a, False)))
    entry(a, "p3_kernel"); kds.append(kd("p3_kernel", **p23.gen_p23(a, True)))
    entry(a, "p4b_kernel")
    a("s_mov_b32 s45, 1\ns_branch P4_BODY")
    entry(a, "p4a_kernel")
    a("s_mov_b32 s45, 0")
    r = p4.gen_p4(a)
    kds.append(kd("p4a_kernel", **r)); kds.append(kd("p4b_kernel", **r))
    L = {
        "k0": f"; @launch kernel=k0_kernel grid=({k0.K0_GRID},1,1) block=(576,1,1) lds={k0.K0_LDS}",
        "p1": f"; @launch kernel=p1_kernel grid=(256,1,1) block=(256,1,1) lds={p1.P1_LDS}",
        "p2": f"; @launch kernel=p2_kernel grid=(256,1,1) block=(256,1,1) lds={p23.P2_LDS}",
        "p3": f"; @launch kernel=p3_kernel grid=(256,1,1) block=(256,1,1) lds={p23.P3_LDS}",
        "p4a": f"; @launch kernel=p4a_kernel grid=(256,1,1) block=(512,1,1) lds={p4.P4_LDS}",
        "p4b": f"; @launch kernel=p4b_kernel grid=(256,1,1) block=(512,1,1) lds={p4.P4_LDS}",
    }
    launches = launches or ["k0", "p1", "p2", "p3", "p4a", "p1", "p2", "p3", "p4b"]
    hdr = open(REF).read().split("; Override")[0]
    text = hdr + "\n".join(L[x] for x in launches) + "\n"
    text += '.amdgcn_target "amdgcn-amd-amdhsa--gfx950"\n.text\n' + a.render()
    text += '.section .rodata,"a"\n' + "".join(kds)
    open(path, "w").write(text)
    print("written", path, "bytes", len(text), "auto nops", a.nnop)


if __name__ == "__main__":
    build(sys.argv[1] if len(sys.argv) > 1 else f"cdna_kernels/{NAME}.s")
```

```python
import sys, subprocess

ITER = 500
UNROLL = 8

def kernel(name, body, init="", vgpr=128, accum=128):
    return f"""
.globl {name}
.p2align 8
.type {name},@function
{name}:
    s_load_dwordx2 s[4:5], s[0:1], 0
    v_lshrrev_b32 v1, 6, v0
    s_lshl_b32 s3, s2, 4
    v_add_u32 v1, s3, v1
    v_lshlrev_b32 v1, 3, v1
    v_mov_b32 v127, v1
    s_waitcnt lgkmcnt(0)
    s_mov_b32 s8, s4
    s_mov_b32 s9, s5
    s_mov_b32 s10, 0x100000
    s_mov_b32 s11, 0x20000
{init}
    s_barrier
    s_memtime s[12:13]
    s_waitcnt lgkmcnt(0)
    s_mov_b32 s16, {ITER}
.p2align 6
L_{name}:
{chr(10).join([body]*UNROLL)}
    s_sub_u32 s16, s16, 1
    s_cmp_lg_u32 s16, 0
    s_cbranch_scc1 L_{name}
    s_nop 15
    s_nop 15
    s_memtime s[14:15]
    s_waitcnt lgkmcnt(0)
    s_sub_u32 s14, s14, s12
    s_subb_u32 s15, s15, s13
    v_mov_b32 v2, s14
    v_mov_b32 v3, s15
    v_and_b32 v4, 63, v0
    v_cmp_eq_u32 vcc, 0, v4
    s_and_saveexec_b64 s[18:19], vcc
    buffer_store_dwordx2 v[2:3], v127, s[8:11], 0 offen
    s_waitcnt vmcnt(0)
    s_endpgm
""", f"""
.amdhsa_kernel {name}
  .amdhsa_next_free_vgpr {vgpr}
  .amdhsa_next_free_sgpr 32
  .amdhsa_accum_offset {accum}
  .amdhsa_group_segment_fixed_size 0
  .amdhsa_kernarg_size 8
  .amdhsa_user_sgpr_count 2
  .amdhsa_user_sgpr_kernarg_segment_ptr 1
  .amdhsa_system_sgpr_workgroup_id_x 1
.end_amdhsa_kernel
""", f"""  - .name: {name}
    .symbol: {name}.kd
    .kernarg_segment_size: 8
    .kernarg_segment_align: 8
    .group_segment_fixed_size: 0
    .private_segment_fixed_size: 0
    .wavefront_size: 64
    .sgpr_count: 32
    .vgpr_count: {vgpr}
    .max_flat_workgroup_size: 1024
    .args:
      - {{.name: kernargs, .size: 8, .offset: 0, .value_kind: by_value}}
"""

def build(kernels, out):
    text = '.amdgcn_target "amdgcn-amd-amdhsa--gfx950"\n.text\n'
    kd = '.section .rodata,"a"\n'
    md = '.amdgpu_metadata\n---\namdhsa.version: [1, 2]\namdhsa.kernels:\n'
    for k in kernels:
        text += k[0]
        kd += ".p2align 6\n" + k[1]
        md += k[2]
    md += "...\n.end_amdgpu_metadata\n"
    open(out + ".s", "w").write(text + kd + md)
    subprocess.check_call(["clang", "-x", "assembler", "-target", "amdgcn-amd-amdhsa",
                           "-mcpu=gfx950", out + ".s", "-o", out + ".co"])

def initregs(lo=8, hi=126, val="0.5"):
    return "\n".join(f"    v_mov_b32 v{i}, {val}" for i in range(lo, hi))

if __name__ == "__main__":
    ks = []
    names = []
    def add(name, body, init=None, **kw):
        ks.append(kernel(name, body, initregs() if init is None else init, **kw))
        names.append(name)
    L = lambda lst: "\n".join("    " + x for x in lst)
    add("exp16", L([f"v_exp_f32 v{16+i}, v{48+i}" for i in range(16)]))
    add("fma16", L([f"v_fma_f32 v{16+i}, v{48+i}, v{48+i}, v{48+i}" for i in range(16)]))
    add("add16", L([f"v_add_f32 v{16+i}, v{48+i}, v{49+i}" for i in range(16)]))
    add("pkfma16", L([f"v_pk_fma_f32 v[{16+2*i}:{17+2*i}], v[{48+2*i}:{49+2*i}], v[{48+2*i}:{49+2*i}], v[{48+2*i}:{49+2*i}]" for i in range(16)]))
    add("cvt16", L([f"v_cvt_pk_bf16_f32 v{16+i}, v{48+i}, v{49+i}" for i in range(16)]))
    add("max3_16", L([f"v_max3_f32 v{16+i}, v{48+i}, v{49+i}, v{50+i}" for i in range(16)]))
    add("mfma4", L([f"v_mfma_f32_32x32x16_bf16 v[{16+16*i}:{31+16*i}], v[8:11], v[12:15], v[{16+16*i}:{31+16*i}]" for i in range(4)]))
    add("mfma8k_4", L([f"v_mfma_f32_32x32x8_bf16 v[{16+16*i}:{31+16*i}], v[8:9], v[12:13], v[{16+16*i}:{31+16*i}]" for i in range(4)]))
    add("smf4", L([f"v_smfmac_f32_32x32x32_bf16 v[{16+16*i}:{31+16*i}], v[8:11], v[96:103], v104" for i in range(4)]))
    add("smf16x64_4", L([f"v_smfmac_f32_16x16x64_bf16 v[{16+4*i}:{19+4*i}], v[8:11], v[96:103], v104" for i in range(4)]))
    add("mfma16_4", L([f"v_mfma_f32_16x16x32_bf16 v[{16+4*i}:{19+4*i}], v[8:11], v[12:15], v[{16+4*i}:{19+4*i}]" for i in range(4)]))
    def attn(order):
        return L(order)
    qk = lambda d: [f"v_mfma_f32_32x32x16_bf16 v[{d}:{d+15}], v[8:11], v[12:15], 0",
                    f"v_mfma_f32_32x32x16_bf16 v[{d}:{d+15}], v[64:67], v[68:71], v[{d}:{d+15}]"]
    ex = lambda d, lo, hi: [f"v_exp_f32 v{d+i}, v{d+i}" for i in range(lo, hi)]
    pv = lambda d, h: [f"v_smfmac_f32_32x32x32_bf16 v[48:63], v[{72+4*h}:{75+4*h}], v[{d+8*h}:{d+8*h+7}], v104"]
    A, B = 16, 32
    body = []
    body += [qk(B)[0]] + ex(A, 0, 4) + [qk(B)[1]] + ex(A, 4, 8) + ["s_nop 0"] + ex(A, 8, 10) + pv(A, 0) + ex(A, 10, 16) + ["s_nop 1"] + pv(A, 1)
    body += [qk(A)[0]] + ex(B, 0, 4) + [qk(A)[1]] + ex(B, 4, 8) + ["s_nop 0"] + ex(B, 8, 10) + pv(B, 0) + ex(B, 10, 16) + ["s_nop 1"] + pv(B, 1)
    add("attn2", attn(body), init=initregs(val="0"))
    body = []
    for i in range(4):
        if i % 2 == 0:
            body.append(f"v_mfma_f32_32x32x16_bf16 v[{16+16*i}:{31+16*i}], v[8:11], v[12:15], v[{16+16*i}:{31+16*i}]")
        else:
            body.append(f"v_smfmac_f32_32x32x32_bf16 v[{16+16*i}:{31+16*i}], v[8:11], v[96:103], v104")
        body += [f"v_exp_f32 v{106+j}, v{110+j}" for j in range(4)]
    add("mix_smf", L(body))
    body = []
    for i in range(4):
        body.append(f"v_mfma_f32_32x32x16_bf16 v[{16+16*i}:{31+16*i}], v[8:11], v[12:15], v[{16+16*i}:{31+16*i}]")
        body += [f"v_exp_f32 v{106+j}, v{110+j}" for j in range(4)]
    add("mix_mfma", L(body))
    body = []
    for i in range(4):
        body.append(f"v_mfma_f32_32x32x16_bf16 v[{16+16*i}:{31+16*i}], v[8:11], v[12:15], v[{16+16*i}:{31+16*i}]")
        body += [f"v_exp_f32 v{106+j}, v{110+j}" for j in range(4)]
        body += [f"v_cvt_pk_bf16_f32 v{114+j}, v{110+j}, v{111+j}" for j in range(2)]
    add("mix_mfma_cvt", L(body))
    body = []
    for i in range(4):
        body.append(f"v_mfma_f32_32x32x16_bf16 v[{16+16*i}:{31+16*i}], v[8:11], v[12:15], v[{16+16*i}:{31+16*i}]")
        body += [f"v_exp_f32 v{106+j}, v{110+j}" for j in range(3)]
    add("mix_mfma3", L(body))
    body = [f"v_exp_f32 v{16+i}, v{48+i}\n    v_fma_f32 v{64+i}, v{48+i}, v{48+i}, v{48+i}" for i in range(16)]
    add("exp_fma", L(body))
    add("exp16h", L([f"v_exp_f16 v{16+i}, v{48+i}" for i in range(16)]))
    build(ks, "mb1")
    open("mb1.names", "w").write("\n".join(names))
```

```python
import mb_gen
from mb_gen import *
mb_gen.UNROLL = 1
mb_gen.ITER = 1
ks = [kernel("evict", "\n".join(f"    v_fma_f32 v{16+i%16}, v{48}, v{48}, v{48}" for i in range(12000)).replace("XX", ""), initregs())]
build(ks, "evict")
```

```python
import mb_gen
from mb_gen import *
mb_gen.UNROLL = 8
ks = []; names = []
def add(name, body, init=None, **kw):
    ks.append(kernel(name, body, initregs(val="0") if init is None else init, **kw)); names.append(name)
L = lambda lst: "\n".join("    " + x for x in lst)
SB = [16, 32, 48]
def r(b, n): return f"v[{b}:{b+n-1}]"
def qk1(t): return f"v_mfma_f32_32x32x16_bf16 {r(SB[t%3],16)}, v[8:11], v[12:15], 0"
def qk2(t): return f"v_mfma_f32_32x32x8_bf16 {r(SB[t%3],16)}, v[96:97], v[98:99], {r(SB[t%3],16)}"
def smf(t, h, o=64): return f"v_smfmac_f32_32x32x32_bf16 {r(o,16)}, v[100:103], {r(SB[t%3]+8*h,8)}, v104"
def wo(k): return [f"v_mfma_f32_16x16x32_bf16 v[108:111], v[112:115], v[116:119], v[108:111]",
                   f"v_mfma_f32_16x16x32_bf16 v[108:111], v[112:115], v[116:119], v[108:111]",
                   f"v_mfma_f32_16x16x16_bf16 v[108:111], v[112:113], v[116:117], v[108:111]"][k]
def sched(pos, wpos=None, two_o=False, extra=None):
    b = []
    for t in range(3):
        X = SB[t % 3]
        sl = {pos[0]: smf(t - 1, 1, 80 if two_o else 64), pos[1]: qk1(t + 2), pos[2]: smf(t, 0), pos[3]: qk2(t + 2)}
        for k in range(16):
            b.append(f"v_exp_f32 v{X+k}, v{X+k}")
            if k in sl: b.append(sl[k])
            if wpos and k in wpos: b.append(wo(wpos.index(k)))
            if extra and k in extra: b.append(extra[k])
    return L(b)
add("s_3_7_11_15", sched([3, 7, 11, 15]))
add("s_3_6_11_15", sched([3, 6, 11, 15]))
add("s_2o", sched([3, 7, 11, 15], two_o=True))
add("s_2_6_10_15", sched([2, 6, 10, 15]))
add("s_1_5_9_13", sched([1, 5, 9, 13]))
add("s_wo_4_8_13", sched([3, 6, 11, 15], [4, 8, 13]))
add("s_wo_b", sched([2, 6, 11, 15], [5, 9, 14]))
add("s_wo_c", sched([2, 5, 10, 15], [8, 9, 13]))
add("s_wait3", sched([3, 7, 11, 15], extra={1: "s_waitcnt vmcnt(0)", 5: "s_waitcnt vmcnt(0)", 9: "s_waitcnt lgkmcnt(0)"}))
build(ks, "mb8")
open("mb8.names", "w").write("\n".join(names))
```

```python
import mb_gen
from mb_gen import *
from mb8 import SB, L
mb_gen.UNROLL = 4
mb_gen.ITER = 10
def r(b, n): return f"v[{b}:{b+n-1}]"
def rnd(lo, hi, mask, orv):
    s = ""
    for i in range(lo, hi):
        s += f"    v_mul_lo_u32 v{i}, v126, s29\n    v_add_u32 v126, {12345+i}, v{i}\n    v_and_b32 v{i}, {mask}, v{i}\n    v_or_b32 v{i}, {orv}, v{i}\n"
    return s
def ini(vz):
    s = initregs(val="0") + "\n    s_mov_b32 s29, 0x9E3779B1\n    v_add_u32 v126, 77, v0\n"
    s += rnd(8, 16, 0x807f807f, 0x3f003f00) + rnd(96, 104, 0x807f807f, 0x3f003f00)
    s += "    v_mov_b32 v99, 0\n    v_mov_b32 v104, 0xdddddddd\n"
    if vz:
        s += "    v_and_b32 v125, 31, v0\n    v_cmp_gt_u32 s[24:25], 19, v125\n    s_nop 1\n" + "".join(f"    v_cndmask_b32 v{i}, 0, v{i}, s[24:25]\n" for i in range(100, 104))
    s += "    s_memrealtime s[26:27]\n"
    return s
qk1 = lambda t: f"v_mfma_f32_32x32x16_bf16 {r(SB[t%3],16)}, v[8:11], v[12:15], 0"
qk2 = lambda t: f"v_mfma_f32_32x32x8_bf16 {r(SB[t%3],16)}, v[96:97], v[98:99], {r(SB[t%3],16)}"
smf = lambda t, h: f"v_smfmac_f32_32x32x32_bf16 v[64:79], v[100:103], {r(SB[t%3]+8*h,8)}, v104"
def sched(ex=True, q=True, p=True):
    b = []
    for t in range(3):
        X = SB[t % 3]
        sl = {3: smf(t - 1, 1) if p else None, 6: qk1(t + 2) if q else None, 11: smf(t, 0) if p else None, 15: qk2(t + 2) if q else None}
        for k in range(16):
            b.append(f"v_exp_f32 v{X+k}, v{X+k}" if ex else "s_nop 1")
            if sl.get(k): b.append(sl[k])
    return L(b)
ks = []; names = []
def add(name, body, vz=True):
    k = list(kernel(name, body, ini(vz)))
    k[0] = k[0].replace("    s_subb_u32 s15, s15, s13\n", "    s_memrealtime s[24:25]\n    s_waitcnt lgkmcnt(0)\n    s_sub_u32 s15, s24, s26\n")
    ks.append(k); names.append(name)
for it in (2, 5, 10, 20, 40, 80):
    mb_gen.ITER = it
    add(f"full{it}", sched())
build(ks, "mb12")
open("mb12.names", "w").write("\n".join(names))
```

```python
import mb_gen
from mb_gen import *
from mb8 import SB, L
mb_gen.UNROLL = 4
mb_gen.ITER = 10
def r(b, n): return f"v[{b}:{b+n-1}]"
def rnd(lo, hi, mask, orv):
    s = ""
    for i in range(lo, hi):
        s += f"    v_mul_lo_u32 v{i}, v126, s29\n    v_add_u32 v126, {12345+i}, v{i}\n    v_and_b32 v{i}, {mask}, v{i}\n    v_or_b32 v{i}, {orv}, v{i}\n"
    return s
def ini(vz):
    s = initregs(val="0") + "\n    s_mov_b32 s29, 0x9E3779B1\n    v_add_u32 v126, 77, v0\n"
    s += rnd(8, 16, 0x807f807f, 0x3f003f00) + rnd(96, 104, 0x807f807f, 0x3f003f00)
    s += "    v_mov_b32 v99, 0\n    v_mov_b32 v104, 0xdddddddd\n"
    if vz:
        s += "    v_and_b32 v125, 31, v0\n    v_cmp_gt_u32 s[24:25], 19, v125\n    s_nop 1\n" + "".join(f"    v_cndmask_b32 v{i}, 0, v{i}, s[24:25]\n" for i in range(100, 104))
    s += "    s_memrealtime s[26:27]\n"
    return s
qk1 = lambda t: f"v_mfma_f32_32x32x16_bf16 {r(SB[t%3],16)}, v[8:11], v[12:15], 0"
qk2 = lambda t: f"v_mfma_f32_32x32x8_bf16 {r(SB[t%3],16)}, v[96:97], v[98:99], {r(SB[t%3],16)}"
smf = lambda t, h: f"v_smfmac_f32_32x32x32_bf16 v[64:79], v[100:103], {r(SB[t%3]+8*h,8)}, v104"
def sched(ex=True, q=True, p=True):
    b = []
    for t in range(3):
        X = SB[t % 3]
        sl = {3: smf(t - 1, 1) if p else None, 6: qk1(t + 2) if q else None, 11: smf(t, 0) if p else None, 15: qk2(t + 2) if q else None}
        for k in range(16):
            b.append(f"v_exp_f32 v{X+k}, v{X+k}" if ex else "s_nop 1")
            if sl.get(k): b.append(sl[k])
    return L(b)
ks = []; names = []
def add(name, body, extra="", **kw):
    k = list(kernel(name, body, ini(True).replace("    s_memrealtime s[26:27]\n", extra + "    s_memrealtime s[26:27]\n"), **kw))
    k[0] = k[0].replace("    s_subb_u32 s15, s15, s13\n", "    s_memrealtime s[24:25]\n    s_waitcnt lgkmcnt(0)\n    s_sub_u32 s15, s24, s26\n")
    ks.append(k); names.append(name)
add("full", sched())
add("kz", sched(), "    v_mov_b32 v97, 0\n")
acc = "".join(f"    v_accvgpr_write_b32 a{i}, 0\n" for i in range(16)) + "".join(f"    v_accvgpr_write_b32 a{16+i}, v{r}\n" for i, r in enumerate([8,9,10,11,12,13,14,15,96,97,98,99,100,101,102,103]))
b = sched().replace("v[64:79]", "a[0:15]")
add("oacc", b, acc, vgpr=160)
b2 = b.replace("v[8:11]", "a[16:19]").replace("v[12:15]", "a[20:23]").replace("v[96:97]", "a[24:25]").replace("v[98:99]", "a[26:27]").replace("v[100:103]", "a[28:31]")
add("allacc", b2, acc, vgpr=160)
q1, q2 = qk1, qk2
qk1 = lambda t: f"v_mfma_f32_32x32x8_bf16 {r(SB[t%3],16)}, v[96:97], v[98:99], 0"
qk2 = lambda t: f"v_mfma_f32_32x32x16_bf16 {r(SB[t%3],16)}, v[8:11], v[12:15], {r(SB[t%3],16)}"
add("swapqk", sched())
qk1 = q1
qk2 = lambda t: "s_nop 0"
add("noqk2", sched())
qk2 = lambda t: f"v_mfma_f32_32x32x16_fp8_fp8 {r(SB[t%3],16)}, v[96:97], v[98:99], {r(SB[t%3],16)}"
add("fp8qk2", sched(), "    v_and_b32 v96, 0xb7b7b7b7, v96\n    v_and_b32 v97, 0xb7b7b7b7, v97\n    v_and_b32 v98, 0xb7b7b7b7, v98\n")
build(ks, "mb12")
open("mb12.names", "w").write("\n".join(names))
```
